```python
import torch

def _softmax(x, axis=-1):
    return torch.softmax(x, dim=axis)

def _gelu(x):
    return torch.nn.functional.gelu(x, approximate='tanh')

def _silu(x):
    return torch.nn.functional.silu(x)

def _sigmoid(x):
    return torch.sigmoid(x)

def _layernorm(x, axis=-1, eps=1e-05):
    m = x.mean(dim=axis, keepdim=True)
    v = x.var(dim=axis, keepdim=True, unbiased=False)
    return (x - m) / torch.sqrt(v + eps)

def _scatter_add(tgt, idx, src, axis=0):
    return tgt.clone().index_add_(axis, idx, src)

def _segment_sum(src, seg, n):
    out = torch.zeros((n,) + src.shape[1:], dtype=src.dtype)
    return out.index_add_(0, seg, src)

def _pad(x, pw):
    flat = tuple((v for pair in reversed(pw) for v in pair))
    return torch.nn.functional.pad(x, flat)
kernel_name = 'adaLN_cond__spectral_gfnet__moe_arch_mod__prompt'

def setup_inputs():

    _w = lambda a: (lambda t: t.to(torch.bfloat16) if t.is_floating_point() else t)(torch.as_tensor(a))

    def _A_setup():
        B, S, D = (1, 2048, 640)
        Df = D // 2 + 1
        return {'x': _w((lambda *s: torch.randn(*s, dtype=torch.bfloat16) * 0.05)(B, S, D)), 'w_r': _w((lambda *s: torch.randn(*s, dtype=torch.bfloat16) * 3.2)(S, Df) * 0.02), 'w_i': _w((lambda *s: torch.randn(*s, dtype=torch.bfloat16) * 3.2)(S, Df) * 0.02)}
    _A_in = _A_setup()

    def _B_setup():
        B, S, D, F, C = (1, 2048, 640, 1536, 1)
        return {'x': _w((lambda *s: torch.randn(*s, dtype=torch.bfloat16) * 0.05)(B, S, D)), 'w_r': _w((lambda *s: torch.randn(*s, dtype=torch.bfloat16) * 0.05)(D)), 'w_gate': _w((lambda *s: torch.randn(*s, dtype=torch.bfloat16) * 0.05)(D, F)), 'w_up': _w((lambda *s: torch.randn(*s, dtype=torch.bfloat16) * 0.05)(D, F)), 'w_down': _w((lambda *s: torch.randn(*s, dtype=torch.bfloat16) * 0.05)(F, D))}
    _B_in = _B_setup()
    return {'A_x': _A_in['x'], 'A_w_r': _A_in['w_r'], 'A_w_i': _A_in['w_i'], 'B_x': _B_in['x'], 'B_w_r': _B_in['w_r'], 'B_w_gate': _B_in['w_gate'], 'B_w_up': _B_in['w_up'], 'B_w_down': _B_in['w_down'], 'c': _w((lambda *s: torch.randn(*s, dtype=torch.bfloat16) * 0.1)(1, 640) * 8.0), 'w_mod': _w((lambda *s: torch.randn(*s, dtype=torch.bfloat16) * 0.1)(640, 6 * 640) * 640 ** (-0.5) * 8.0)}

def reference(A_x, A_w_r, A_w_i, B_x, B_w_r, B_w_gate, B_w_up, B_w_down, c, w_mod):

    def _A_ref(x, w_r, w_i):
        B, S, D = x.shape
        X = (lambda x, axes=(-2, -1): torch.fft.rfft2(x.float(), dim=axes))(x, axes=(-2, -1))
        W = w_r + 1j * w_i
        X = X * W
        y = (lambda x, s, axes=(-2, -1): torch.fft.irfft2(x, s=s, dim=axes).to(torch.bfloat16))(X, (S, D), axes=(-2, -1))
        return y

    def _B_ref(x, w_r, w_gate, w_up, w_down):
        B, S, D = x.shape
        C = 1
        r = x @ w_r
        idx = torch.argsort(-r, axis=-1)[:, :C]
        idx_e = (lambda x, n, axis: torch.repeat_interleave(x, n, dim=axis))(idx.reshape(B, C, 1), D, axis=2)
        x_sel = (lambda x, i, axis: torch.take_along_dim(x, i, dim=axis))(x, idx_e, axis=1)
        g = _silu(x_sel @ w_gate)
        u = x_sel @ w_up
        y = g * u @ w_down
        r_sel = _sigmoid((lambda x, i, axis: torch.take_along_dim(x, i, dim=axis))(r, idx, axis=1))
        y = y * r_sel.reshape(B, C, 1)
        b_off = (torch.arange(B) * S).reshape(B, 1)
        flat_idx = (idx + b_off).reshape(B * C)
        zero = (x * 0.0).reshape(B * S, D)
        upd = _scatter_add(zero, flat_idx, y.reshape(B * C, D), axis=0)
        return x + upd.reshape(B, S, D)
    x = A_x
    mod = (_silu(c) @ w_mod).reshape(c.shape[0], 6, 1, -1)
    sa, ca, ga, sb, cb, gb = (mod[:, 0].clone(), mod[:, 1].clone(), mod[:, 2].clone(), mod[:, 3].clone(), mod[:, 4].clone(), mod[:, 5].clone())
    h = _layernorm(x, axis=-1) * (1 + ca) + sa
    x = x + ga * _A_ref(h, A_w_r, A_w_i)
    h = _layernorm(x, axis=-1) * (1 + cb) + sb
    x = x + gb * _B_ref(h, B_w_r, B_w_gate, B_w_up, B_w_down)
    return x
```

```python
import re, struct, math

def f2u(x):
    return struct.unpack('<I', struct.pack('<f', x))[0]
def fl(x):
    return "0x%08x" % f2u(x)

REG_RE = re.compile(r'(?<![\w.])([vas])(\d+)(?![\w\[])|(?<![\w.])([vas])\[(\d+):(\d+)\]|(?<![\w.])(vcc|exec|m0)(_lo|_hi)?(?![\w])')

def regs_of(tok):
    out = []
    for m in REG_RE.finditer(tok):
        if m.group(1):
            out.append(m.group(1) + m.group(2))
        elif m.group(3):
            out += [m.group(3) + str(i) for i in range(int(m.group(4)), int(m.group(5)) + 1)]
        else:
            out.append(m.group(6))
    return out

TRANS = ('v_exp_f32', 'v_log_f32', 'v_rcp_f32', 'v_rsq_f32', 'v_sqrt_f32', 'v_sin_f32', 'v_cos_f32', 'v_rcp_iflag_f32')
NODST_S = ('s_cmp', 's_branch', 's_cbranch', 's_waitcnt', 's_barrier', 's_setprio', 's_sleep', 's_nop', 's_endpgm', 's_bitcmp', 's_setpc', 's_setreg', 's_sethalt', 's_wakeup')

class Ins:
    def __init__(self, text):
        self.text = text
        t = text.split(';')[0].strip()
        self.label = None
        self.op = None
        self.w = set(); self.r = set()
        if not t or t.startswith('.'):
            if t.endswith(':'):
                self.label = t[:-1]
            return
        if t.endswith(':'):
            self.label = t[:-1]; return
        parts = t.split(None, 1)
        op = parts[0]; self.op = op
        rest = parts[1] if len(parts) > 1 else ''
        ops = []; depth = 0; cur = ''
        for ch in rest:
            if ch in '[(': depth += 1
            if ch in '])': depth -= 1
            if ch == ',' and depth == 0:
                ops.append(cur.strip()); cur = ''
            else:
                cur += ch
        if cur.strip(): ops.append(cur.strip())
        self.mods = ''
        if ops:
            last = ops[-1].split(None, 1)
            if len(last) > 1 and not op.startswith('s_waitcnt'):
                ops[-1] = last[0]; self.mods = last[1]
        self.ops = ops
        R = [regs_of(o) for o in ops]
        base = re.sub(r'_(e32|e64|dpp|sdwa)$', '', op)
        self.base = base
        self.valu = op.startswith('v_')
        self.mfma = op.startswith('v_mfma')
        self.trans = base in TRANS
        self.dpp = op.endswith('_dpp') or 'row_' in self.mods or 'quad_perm' in self.mods or 'wave_' in self.mods
        self.ds = op.startswith('ds_')
        self.vmem = op.startswith(('buffer_', 'global_', 'flat_'))
        self.smem = op.startswith(('s_load', 's_buffer_load', 's_memtime', 's_memrealtime', 's_atomic'))
        self.salu = op.startswith('s_') and not self.smem
        self.dot = base.startswith('v_dot')
        self.ldsdma = False
        self.store_data = set()
        allr = lambda L: set(x for l in L for x in l)
        if self.valu:
            if base == 'v_nop': return
            self.w = set(R[0]); self.r = allr(R[1:])
            if base.startswith('v_cmpx'): self.w.add('exec')
            if base in ('v_add_co_u32', 'v_sub_co_u32', 'v_subrev_co_u32', 'v_addc_co_u32', 'v_subb_co_u32', 'v_mad_u64_u32', 'v_div_scale_f32'):
                self.w |= set(R[1]); self.r = allr(R[2:])
            if base in ('v_fmac_f32', 'v_pk_fmac_f16', 'v_dot2c_f32_bf16', 'v_writelane_b32') or self.dpp or op.endswith('_sdwa'):
                self.r |= set(R[0])
            if base.startswith('v_permlane') or base == 'v_swap_b32':
                self.w = allr(R); self.r = allr(R)
            if self.mfma:
                self.D = R[0]; self.A = R[1]; self.B = R[2]; self.C = R[3]
                self.passes = 8 if '32x32x16' in op else 4
                assert '16x16x32' in op or '32x32x16' in op, op
        elif self.ds:
            if op.startswith(('ds_read', 'ds_bpermute', 'ds_permute', 'ds_swizzle')) or '_rtn' in op:
                self.w = set(R[0]); self.r = allr(R[1:])
                if 'd16' in op: self.r |= set(R[0])
            else:
                self.r = allr(R)
        elif self.vmem:
            if op in ('buffer_wbl2', 'buffer_inv'): return
            if '_lds_' in op or re.search(r'\blds\b', self.mods):
                self.ldsdma = True; self.r = allr(R) | {'m0'}
            elif '_load' in op:
                self.w = set(R[0]); self.r = allr(R[1:])
                if 'd16' in op: self.r |= set(R[0])
            elif 'atomic' in op:
                self.r = allr(R)
                if re.search(r'\bsc0\b', self.mods):
                    self.w = set(R[0])
                    if op.startswith('global'): self.r = allr(R[1:])
            else:
                self.r = allr(R)
                if op.endswith(('x3', 'x4')):
                    self.store_data = set(R[1] if op.startswith('global') else R[0])
        elif self.smem:
            self.w = set(R[0]); self.r = allr(R[1:])
        else:
            if op.startswith(NODST_S):
                self.r = allr(R)
            else:
                self.w = set(R[0]); self.r = allr(R[1:])
                if 'saveexec' in op: self.w.add('exec'); self.r.add('exec')
                if op.startswith(('s_addk', 's_mulk', 's_cmov', 's_bitset')): self.r |= set(R[0])
    def states(self):
        if self.op is None: return 0
        if self.op == 's_nop': return int(self.ops[0], 0) + 1
        return 1

def need(p, c):
    n = 0
    vw = set(x for x in p.w if x[0] in 'va' and x != 'vcc')
    sw = set(x for x in p.w if x[0] == 's' or x == 'vcc')
    if p.valu and not p.mfma:
        if c.mfma and (vw & c.r): n = max(n, 3 if p.dot else 2)
        if p.trans and c.valu and not c.trans and (vw & c.r): n = max(n, 1)
        if c.valu and (sw & c.r):
            n = max(n, 2)
            if c.base in ('v_readlane_b32', 'v_writelane_b32') and (sw & set(regs_of(c.ops[2]))): n = max(n, 4)
        if c.vmem and (sw & c.r): n = max(n, 5)
        if c.valu and c.dpp and (vw & c.r): n = max(n, 2)
        if c.base in ('v_readlane_b32', 'v_readfirstlane_b32') and (vw & c.r): n = max(n, 1)
        if c.valu and c.base.startswith('v_permlane') and (vw & c.r): n = max(n, 2)
        if 'exec' in p.w:
            if c.valu and c.dpp: n = max(n, 5)
            if c.mfma or c.base in ('v_readlane_b32', 'v_readfirstlane_b32', 'v_writelane_b32') or c.base.startswith('v_permlane'): n = max(n, 4)
            if c.valu and 'exec' in c.r: n = max(n, 2)
        if p.dot and c.valu and (vw & (c.r | c.w)):
            if c.base == p.base and not (vw & set(regs_of(c.ops[1]) + regs_of(c.ops[2]))): pass
            else: n = max(n, 3)
        if (p.op.endswith('_sdwa') and 'dst_sel:DWORD' not in p.mods) and c.valu and (vw & (c.r | c.w)): n = max(n, 1)
    if p.mfma:
        D = set(p.D)
        big = {4: 8, 8: 12}[p.passes]
        if c.mfma:
            if D & (set(c.A) | set(c.B)): n = max(n, big)
            if D & set(c.C):
                if not (c.C == p.D and c.passes == p.passes): n = max(n, big - 2)
            elif D & set(c.D): n = max(n, big)
        elif (c.valu or c.vmem or c.ds) and (D & (c.r | c.w)): n = max(n, big)
        if c.valu and not c.mfma and (set(p.C) & c.w): n = max(n, {4: 3, 8: 7}[p.passes])
    if p.store_data and (p.store_data & c.w):
        n = max(n, 2 if c.valu else 1)
    if p.salu and 'm0' in p.w and (c.ldsdma or 'addtid' in (c.op or '')): n = max(n, 1)
    return n

class Asm:
    def __init__(self):
        self.lines = []
    def __call__(self, text):
        for l in text.split('\n'):
            self.lines.append(l.strip())
    def finalize(self, check_wait=True):
        ins = [Ins(l) for l in self.lines]
        out = []
        targets = {}
        for i, x in enumerate(ins):
            if x.op and x.op.startswith(('s_branch', 's_cbranch')):
                targets.setdefault(x.ops[0], []).append(i)
        extra = [0] * len(ins)
        def required(i):
            c = ins[i]; worst = 0
            stack = [(i - 1, 0)]; seen = set()
            while stack:
                j, dist = stack.pop()
                while j >= 0 and dist < 13:
                    if (j, dist) in seen: break
                    seen.add((j, dist))
                    p = ins[j]
                    if p.label:
                        for b in targets.get(p.label, []):
                            stack.append((b - 1, dist + 1 + extra[b]))
                        j -= 1; continue
                    if p.op is None:
                        j -= 1; continue
                    if p.op in ('s_branch', 's_endpgm', 's_setpc_b64'): break
                    worst = max(worst, need(p, c) - dist)
                    dist += p.states() + extra[j]
                    j -= 1
            return worst
        for i, x in enumerate(ins):
            if x.op and x.op != 's_nop':
                extra[i] = max(0, required(i))
        res = []
        for i, x in enumerate(ins):
            if extra[i]: res.append('    s_nop %d' % (extra[i] - 1))
            res.append(x.text if (x.label or x.op is None) else '    ' + x.text)
        if check_wait: self.check_waits(ins)
        self.nops = sum(extra)
        return '\n'.join(res) + '\n'
    def check_waits(self, ins):
        vm = []; lg = []
        for x in ins:
            if x.op is None:
                continue
            if x.op in ('s_endpgm', 's_branch'):
                if x.op == 's_endpgm': vm = []; lg = []
                continue
            if x.op == 's_waitcnt':
                m = re.search(r'vmcnt\((\d+)\)', x.text)
                if m:
                    n = int(m.group(1)); vm = vm[max(0, len(vm) - n):] if n else []
                    if n > len(vm): pass
                m = re.search(r'lgkmcnt\((\d+)\)', x.text)
                if m:
                    n = int(m.group(1))
                    if n == 0: lg = []
                    elif not any(k == 's' for k, _ in lg): lg = lg[len(lg) - n:] if n < len(lg) else lg
                continue
            touch = x.r | x.w
            for q, nm in ((vm, 'vmcnt'), (lg, 'lgkmcnt')):
                for k, d in q:
                    if d & touch and not ('d16' in x.op and k != 's' and not (d & (x.r - x.w))):
                        raise Exception('missing %s wait before: %s (regs %s)' % (nm, x.text, sorted(d & touch)))
            if x.vmem and x.op not in ('buffer_wbl2', 'buffer_inv'): vm.append(('v', set(x.w)))
            elif x.op in ('buffer_wbl2', 'buffer_inv'): vm.append(('v', set()))
            elif x.ds: lg.append(('d', set(x.w)))
            elif x.smem: lg.append(('s', set(x.w)))
```

```python
import math, sys
from asmlib import *

NAME = "adaLN_cond__spectral_gfnet__moe_arch_mod__prompt"
WS_MOD = 0
WS_RC = 16384
WS_IC = 17408
WS_HID = 20480
WS_H2C = 32768
WS_OUTC = WS_H2C + 256 * 2560
WS_Z1 = 2 << 20
WS_Z2 = 6 << 20
LOG2E = math.log2(math.e)
C1 = math.cos(2 * math.pi / 5); C2 = math.cos(4 * math.pi / 5)
S1 = math.sin(2 * math.pi / 5); S2 = math.sin(4 * math.pi / 5)

def head(a, name):
    a(f""".globl {name}
.p2align 8
.type {name},@function
{name}:""")

def desc(name, vgpr, sgpr=64):
    vg = (vgpr + 3) // 4 * 4
    return f""".p2align 6
.amdhsa_kernel {name}
  .amdhsa_next_free_vgpr {vg}
  .amdhsa_next_free_sgpr {sgpr}
  .amdhsa_accum_offset {vg}
  .amdhsa_group_segment_fixed_size 0
  .amdhsa_kernarg_size 104
  .amdhsa_user_sgpr_count 2
  .amdhsa_user_sgpr_kernarg_segment_ptr 1
  .amdhsa_system_sgpr_workgroup_id_x 1
  .amdhsa_float_denorm_mode_32 3
.end_amdhsa_kernel
"""

def addbase(a, d, s, off):
    a(f"s_add_u32 s{d}, s{s}, {off}")
    a(f"s_addc_u32 s{d+1}, s{s+1}, 0")

def reduce8(a, acc):
    for j in range(4): a(f"v_permlane32_swap_b32 v{acc+j}, v{acc+4+j}")
    for j in range(4): a(f"v_add_f32 v{acc+j}, v{acc+j}, v{acc+4+j}")
    for j in range(2): a(f"v_permlane16_swap_b32 v{acc+j}, v{acc+2+j}")
    for j in range(2): a(f"v_add_f32 v{acc+j}, v{acc+j}, v{acc+2+j}")
    for r in (8, 4, 2, 1):
        for j in range(2):
            a(f"v_add_f32_dpp v{acc+j}, v{acc+j}, v{acc+j} row_ror:{r} row_mask:0xf bank_mask:0xf")

def gemv_acc(a, acc, w, s, first, t):
    for j in range(4):
        a(f"v_lshlrev_b32 v{t}, 16, v{w+j}")
        a(f"v_and_b32 v{t+1}, 0xffff0000, v{w+j}")
        if first:
            a(f"v_mul_f32 v{acc+2*j}, v{t}, v{s}")
            a(f"v_mul_f32 v{acc+2*j+1}, v{t+1}, v{s}")
        else:
            a(f"v_fmac_f32 v{acc+2*j}, v{t}, v{s}")
            a(f"v_fmac_f32 v{acc+2*j+1}, v{t+1}, v{s}")

def sigmoid(a, d, s):
    a(f"v_mul_f32 v{d}, {fl(-LOG2E)}, v{s}")
    a(f"v_exp_f32 v{d}, v{d}")
    a(f"v_add_f32 v{d}, 1.0, v{d}")
    a(f"v_rcp_f32 v{d}, v{d}")

def rnd_bf16(a, r):
    a(f"v_cvt_pk_bf16_f32 v{r}, v{r}, v{r}")
    a(f"v_and_b32 v{r}, 0xffff0000, v{r}")

def k0(a):
    head(a, "k0_kernel")
    a("""s_cmp_ge_u32 s2, 240
s_cbranch_scc1 k0_end
s_load_dwordx4 s[4:7], s[0:1], 64
s_load_dwordx2 s[8:9], s[0:1], 96
s_and_b32 s3, s2, 7
s_mul_i32 s3, s3, 30
s_lshr_b32 s10, s2, 3
s_add_u32 s3, s3, s10          ; colgrp16
v_and_b32 v1, 127, v0          ; k0
v_lshrrev_b32 v2, 7, v0        ; half
v_lshlrev_b32 v2, 4, v2
s_lshl_b32 s10, s3, 5
v_add_u32 v2, s10, v2
v_mul_u32_u24 v3, 7680, v1
v_add_u32 v2, v2, v3
v_lshlrev_b32 v1, 1, v1
""")
    for i in range(1, 5): a(f"v_add_u32 v{2+i}, {i*128*7680}, v2")
    a("s_waitcnt lgkmcnt(0)")
    for i in range(5): a(f"global_load_ushort v{8+i}, v1, s[4:5] offset:{256*i}")
    for i in range(5): a(f"global_load_dwordx4 v[{16+4*i}:{19+4*i}], v{2+i}, s[6:7]")
    a("s_waitcnt vmcnt(5)")
    for i in range(5):
        a(f"v_lshlrev_b32 v{8+i}, 16, v{8+i}")
        sigmoid(a, 14, 8 + i)
        a(f"v_mul_f32 v{8+i}, v{8+i}, v14")
        rnd_bf16(a, 8 + i)
    for i in range(5):
        a(f"s_waitcnt vmcnt({4-i})")
        gemv_acc(a, 40, 16 + 4 * i, 8 + i, i == 0, 14)
    reduce8(a, 40)
    a("""v_lshrrev_b32 v1, 4, v0
v_lshlrev_b32 v1, 3, v1        ; (wave*4+g)*8
ds_write_b64 v1, v[40:41]
s_waitcnt lgkmcnt(0)
s_barrier
v_cmp_gt_u32 vcc, 16, v0
s_and_saveexec_b64 s[12:13], vcc
s_cbranch_execz k0_end
v_lshrrev_b32 v1, 3, v0
v_lshlrev_b32 v1, 6, v1
v_and_b32 v2, 7, v0
v_lshl_add_u32 v1, v2, 2, v1
ds_read2_b32 v[4:5], v1 offset0:0 offset1:8
s_mul_i32 s10, s3, 1639
s_lshr_b32 s10, s10, 16
s_mov_b32 s11, 0
s_cmp_eq_u32 s10, 1
s_cselect_b32 s11, 1.0, s11
s_cmp_eq_u32 s10, 4
s_cselect_b32 s11, 1.0, s11
s_cmp_eq_u32 s10, 2""")
    a(f"s_cselect_b32 s14, {fl(1.0/(2048*640))}, 1.0")
    a("""s_lshl_b32 s10, s3, 6
v_lshl_add_u32 v1, v0, 2, s10
s_waitcnt lgkmcnt(0)
v_add_f32 v4, v4, v5""")
    rnd_bf16(a, 4)
    a("v_add_f32 v4, s11, v4")
    rnd_bf16(a, 4)
    a("""v_mul_f32 v4, s14, v4
global_store_dword v1, v4, s[8:9]
k0_end:
s_endpgm""")
    return desc("k0_kernel", 48)

def sincos(a, c, s, th):
    a(f"v_cos_f32 v{c}, v{th}")
    a(f"v_sin_f32 v{s}, v{th}")

def mfma(a, d, x, y, c):
    cs = "0" if c is None else f"v[{c}:{c+3}]"
    a(f"v_mfma_f32_16x16x32_bf16 v[{d}:{d+3}], v[{x}:{x+3}], v[{y}:{y+3}], {cs}")

def wave_sum(a, regs, sdst):
    for r in (8, 4, 2, 1):
        for x in regs: a(f"v_add_f32_dpp v{x}, v{x}, v{x} row_ror:{r} row_mask:0xf bank_mask:0xf")
    for x in regs: a(f"v_add_f32_dpp v{x}, v{x}, v{x} row_bcast:15 row_mask:0xa bank_mask:0xf")
    for x in regs: a(f"v_add_f32_dpp v{x}, v{x}, v{x} row_bcast:31 row_mask:0xc bank_mask:0xf")
    for x, s in zip(regs, sdst): a(f"v_readlane_b32 s{s}, v{x}, 63")

def pk(a, op, d, x, y, z=None, mods=""):
    def f(o): return o if isinstance(o, str) else f"v[{o}:{o+1}]"
    if z is None: a(f"v_pk_{op}_f32 {f(d)}, {f(x)}, {f(y)} {mods}")
    else: a(f"v_pk_{op}_f32 {f(d)}, {f(x)}, {f(y)}, {f(z)} {mods}")

def cmul_tw(a, tr, ti, c, s, t):
    for h in (0, 2):
        pk(a, "mul", t + h, ti + h, s + h)
        pk(a, "mul", ti + h, ti + h, c + h)
    for h in (0, 2):
        pk(a, "fma", ti + h, tr + h, s + h, ti + h, "neg_lo:[1,0,0] neg_hi:[1,0,0]")
        pk(a, "fma", tr + h, tr + h, c + h, t + h)

def k1(a):
    head(a, "k1_kernel")
    X = 8
    SA = 14
    CA = 24
    H = 34
    CM, SM, NSM = 44, 48, 52
    TWC, TWS = 56, 64
    FB = 72
    T = 96
    a("""s_cmp_ge_u32 s2, 256
s_cbranch_scc1 k1_end
s_load_dwordx2 s[4:5], s[0:1], 0
s_load_dwordx2 s[8:9], s[0:1], 96
v_lshrrev_b32 v1, 6, v0
v_and_b32 v0, 63, v0
v_readfirstlane_b32 s3, v1     ; wave
v_lshlrev_b32 v1, 2, v0
v_lshlrev_b32 v2, 3, v0
s_lshl_b32 s10, s3, 8
s_add_u32 s10, s10, s2
s_mul_i32 s10, s10, 1280
s_waitcnt lgkmcnt(0)""")
    addbase(a, 4, 4, "s10")
    addbase(a, 6, 8, 2560)
    for t in range(5): a(f"global_load_dword v{X+t}, v1, s[4:5] offset:{256*t}")
    for t in range(5): a(f"global_load_dwordx2 v[{CA+2*t}:{CA+2*t+1}], v2, s[6:7] offset:{512*t}")
    for t in range(5): a(f"global_load_dwordx2 v[{SA+2*t}:{SA+2*t+1}], v2, s[8:9] offset:{512*t}")
    a(f"""s_lshr_b32 s11, s3, 1          ; k5
s_and_b32 s12, s3, 1           ; kh
v_and_b32 v3, 15, v0           ; c16
v_lshrrev_b32 v4, 4, v0        ; g
v_lshrrev_b32 v5, 2, v3
s_lshl_b32 s13, s12, 2
v_add_u32 v5, s13, v5          ; k1
v_and_b32 v6, 3, v3
v_mad_u32_u24 v6, v6, 5, s11   ; kappa
v_cvt_f32_u32 v6, v6
v_lshlrev_b32 v7, 9, v4
v_add_u32 v7, s2, v7           ; 512 g + s2
v_mul_u32_u24 v{T}, v5, v7
v_lshl_add_u32 v{T+1}, v5, 8, v{T}
v_and_b32 v{T}, 2047, v{T}
v_and_b32 v{T+1}, 2047, v{T+1}
v_cvt_f32_u32 v{T}, v{T}
v_cvt_f32_u32 v{T+1}, v{T+1}
v_mul_f32 v{T}, {fl(1/2048)}, v{T}
v_mul_f32 v{T+1}, {fl(1/2048)}, v{T+1}
v_mul_f32 v{T+2}, {fl(1/20)}, v6""")
    for h in range(2):
        for p in range(2):
            for u in range(2):
                d1 = 2 * p + u
                if d1 == 0: th = T + h
                else:
                    th = T + 3
                    a(f"v_fmamk_f32 v{th}, v{T+2}, {fl(d1)}, v{T+h}")
                sincos(a, T + 4 + u, T + 6 + u, th)
            a(f"v_cvt_pk_bf16_f32 v{CM+2*h+p}, v{T+4}, v{T+5}")
            a(f"v_cvt_pk_bf16_f32 v{SM+2*h+p}, v{T+6}, v{T+7}")
            a(f"v_cvt_pk_bf16_f32 v{NSM+2*h+p}, -v{T+6}, -v{T+7}")
    a(f"""v_mul_f32 v{T}, {fl(1/640)}, v6
v_lshlrev_b32 v{T+1}, 2, v4
v_cvt_f32_u32 v{T+1}, v{T+1}            ; 4g
v_mul_f32 v{T+2}, v{T+1}, v{T}""")
    for et in range(2):
        for rr in range(4):
            o = 16 * et + rr
            if o == 0: th = T + 2
            else:
                th = T + 3
                a(f"v_fmamk_f32 v{th}, v{T}, {fl(o)}, v{T+2}")
            sincos(a, TWC + 4 * et + rr, TWS + 4 * et + rr, th)
    a(f"""v_cvt_f32_u32 v{T}, v3
v_mul_f32 v{T}, {fl(1/32)}, v{T}
v_mul_f32 v{T+2}, v{T+1}, v{T}""")
    for p in range(2):
        for u in range(2):
            rr = 2 * p + u
            if rr == 0: th = T + 2
            else:
                th = T + 3
                a(f"v_fmamk_f32 v{th}, v{T}, {fl(rr)}, v{T+2}")
            sincos(a, T + 4 + u, T + 6 + u, th)
        a(f"v_cvt_pk_bf16_f32 v{FB+p}, -v{T+6}, -v{T+7}")
        a(f"v_cvt_pk_bf16_f32 v{FB+2+p}, v{T+4}, v{T+5}")
        a(f"v_cvt_pk_bf16_f32 v{FB+4+p}, v{T+6}, v{T+7}")
    a(f"""v_and_b32 v{T}, 1, v0
v_mul_u32_u24 v{T}, 0x8000, v{T}
v_lshl_or_b32 v{T}, v{T}, 16, v{T}""")
    for j in range(6):
        a(f"v_xor_b32 v{FB+12+j}, v{T}, v{FB+j}")
    for j in range(6):
        a(f"v_xor_b32 v{FB+6+j}, 0x80000000, v{FB+j}")
        a(f"v_xor_b32 v{FB+18+j}, 0x80000000, v{FB+12+j}")
    a(f"""s_mul_i32 s13, s3, 272
v_add_u32 v1, s13, v1
v_mul_u32_u24 v2, 544, v4
v_lshrrev_b32 v{T}, 2, v3
v_lshl_add_u32 v2, v{T}, 6, v2
v_and_b32 v{T}, 3, v3
v_lshl_add_u32 v2, v{T}, 3, v2
s_lshl_b32 s13, s11, 1
s_max_u32 s13, s13, 1
s_sub_u32 s13, s13, 1
s_mul_i32 s13, s13, {8*272}
v_add_u32 v2, s13, v2
s_lshl_b32 s13, s3, 11
s_mul_i32 s14, s2, 12288
s_add_u32 s13, s13, s14
s_add_u32 s13, s13, {WS_Z1}
v_lshlrev_b32 v5, 9, v4
v_lshl_add_u32 v5, v3, 4, v5
s_mov_b32 s16, {fl(C1)}
s_mov_b32 s18, {fl(C2)}
s_mov_b32 s20, {fl(-S1)}
s_mov_b32 s22, {fl(-S2)}""")
    addbase(a, 14, 8, "s13")
    a("s_waitcnt vmcnt(10)")
    for t in range(5):
        a(f"v_lshlrev_b32 v{H+2*t}, 16, v{X+t}")
        a(f"v_and_b32 v{H+2*t+1}, 0xffff0000, v{X+t}")
    pk(a, "add", T, H, H + 2)
    pk(a, "mul", T + 2, H, H)
    for t in range(1, 5):
        if t >= 2: pk(a, "add", T, T, H + 2 * t)
        pk(a, "fma", T + 2, H + 2 * t, H + 2 * t, T + 2)
    a(f"v_add_f32 v{T}, v{T}, v{T+1}")
    a(f"v_add_f32 v{T+2}, v{T+2}, v{T+3}")
    wave_sum(a, [T, T + 2], [24, 25])
    a(f"""v_mov_b32 v{T}, {fl(1/640)}
v_mul_f32 v{T+1}, s24, v{T}           ; mean
v_mul_f32 v{T+2}, s25, v{T}
v_fma_f32 v{T+2}, -v{T+1}, v{T+1}, v{T+2}
v_max_f32 v{T+2}, 0, v{T+2}
v_add_f32 v{T+2}, {fl(1e-5)}, v{T+2}
v_rsq_f32 v{T+2}, v{T+2}
v_mul_f32 v{T+4}, -v{T+1}, v{T+2}""".replace("v_mul_f32 v%d, -v" % (T + 4), "v_mul_f32_e64 v%d, -v" % (T + 4)))
    for t in range(5): pk(a, "fma", H + 2 * t, H + 2 * t, T + 2, T + 4, "op_sel_hi:[1,0,0]")
    a("s_waitcnt vmcnt(0)")
    for t in range(5): pk(a, "fma", H + 2 * t, H + 2 * t, CA + 2 * t, SA + 2 * t)
    bs = "op_sel_hi:[1,0,1]"
    pk(a, "add", T, H + 2, H + 8)
    pk(a, "add", T + 2, H + 4, H + 6)
    pk(a, "add", T + 4, H + 2, H + 8, None, "neg_lo:[0,1] neg_hi:[0,1]")
    pk(a, "add", T + 6, H + 4, H + 6, None, "neg_lo:[0,1] neg_hi:[0,1]")
    pk(a, "fma", H + 2, T, "s[16:17]", H, bs)
    pk(a, "fma", H + 6, T, "s[18:19]", H, bs)
    pk(a, "add", H, H, T)
    pk(a, "mul", H + 4, T + 4, "s[20:21]", None, "op_sel_hi:[1,0]")
    pk(a, "mul", H + 8, T + 4, "s[22:23]", None, "op_sel_hi:[1,0]")
    pk(a, "fma", H + 2, T + 2, "s[18:19]", H + 2, bs)
    pk(a, "fma", H + 6, T + 2, "s[16:17]", H + 6, bs)
    pk(a, "add", H, H, T + 2)
    pk(a, "fma", H + 4, T + 6, "s[22:23]", H + 4, bs)
    pk(a, "fma", H + 8, T + 6, "s[20:21]", H + 8, bs + " neg_lo:[1,0,0] neg_hi:[1,0,0]")
    for p in range(5):
        a(f"v_cvt_pk_bf16_f32 v{X+p}, v{H+2*p}, v{H+2*p+1}")
        a(f"ds_write_b32 v1, v{X+p} offset:{p*8*272}")
    a("""s_waitcnt lgkmcnt(0)
s_barrier
s_cmp_ge_u32 s3, 6
s_cbranch_scc1 k1_end""")
    UR, UI = 8, 16
    TR, TI = 24, 32
    for et in range(2):
        for h in range(2):
            a(f"ds_read_b64_tr_b16 v[{UR+4*et+2*h}:{UR+4*et+2*h+1}], v2 offset:{h*272+et*32}")
    a("s_cmp_eq_u32 s11, 0")
    a("s_cbranch_scc1 k1_real")
    for et in range(2):
        for h in range(2):
            a(f"ds_read_b64_tr_b16 v[{UI+4*et+2*h}:{UI+4*et+2*h+1}], v2 offset:{8*272+h*272+et*32}")
    a("s_waitcnt lgkmcnt(4)")
    for et in range(2):
        mfma(a, TR + 4 * et, UR + 4 * et, CM, None)
        mfma(a, TI + 4 * et, UR + 4 * et, NSM, None)
    a("s_waitcnt lgkmcnt(0)")
    for et in range(2):
        mfma(a, TR + 4 * et, UI + 4 * et, SM, TR + 4 * et)
        mfma(a, TI + 4 * et, UI + 4 * et, CM, TI + 4 * et)
    a("s_branch k1_tw")
    a("k1_real:")
    a("s_waitcnt lgkmcnt(0)")
    for et in range(2):
        mfma(a, TR + 4 * et, UR + 4 * et, CM, None)
        mfma(a, TI + 4 * et, UR + 4 * et, NSM, None)
    a("k1_tw:")
    AB = 8
    for et in range(2):
        cmul_tw(a, TR + 4 * et, TI + 4 * et, TWC + 4 * et, TWS + 4 * et, T)
        for p in range(2):
            a(f"v_cvt_pk_bf16_f32 v{AB+4*et+p}, v{TR+4*et+2*p}, v{TR+4*et+2*p+1}")
            a(f"v_cvt_pk_bf16_f32 v{AB+4*et+2+p}, v{TI+4*et+2*p}, v{TI+4*et+2*p+1}")
    XR, XI = T, T + 8
    for et in range(2):
        for q in range(2):
            fb = FB + (et * 2 + q) * 6
            mfma(a, XR + 4 * q, AB + 4 * et, fb + 2, None if et == 0 else XR + 4 * q)
            mfma(a, XI + 4 * q, AB + 4 * et, fb, None if et == 0 else XI + 4 * q)
    for q in range(2):
        for rr in range(4):
            a(f"v_cvt_pk_bf16_f32 v{16+4*q+rr}, v{XR+4*q+rr}, v{XI+4*q+rr}")
        a(f"global_store_dwordx4 v5, v[{16+4*q}:{19+4*q}], s[14:15] offset:{256*q}")
    a("""k1_end:
s_endpgm""")
    return desc("k1_kernel", 112)

def k2(a):
    head(a, "k2_kernel")
    Z = 8
    WR, WI = 16, 24
    MA = 32
    F = 48
    T = 56
    AD = 80
    IS = 80; KS = 16 * IS; BUF = 16 * KS
    a(f"""s_cmp_ge_u32 s2, 192
s_cbranch_scc1 k2_end
s_load_dwordx4 s[4:7], s[0:1], 8
s_load_dwordx2 s[8:9], s[0:1], 96
v_lshrrev_b32 v1, 6, v0
v_and_b32 v0, 63, v0
v_readfirstlane_b32 s3, v1     ; wave
v_and_b32 v3, 15, v0           ; i
v_lshrrev_b32 v4, 4, v0        ; g
s_and_b32 s10, s2, 7           ; x
s_lshr_b32 s11, s2, 6          ; k5
s_bfe_u32 s12, s2, 0x30003     ; jg
s_sub_u32 s13, 0, s10
s_and_b32 s13, s13, 7
s_cmp_lt_u32 s12, 4
s_cselect_b32 s13, s10, s13    ; k1
s_cselect_b32 s20, 1, -1       ; sigma
s_cselect_b32 s21, 0, 0x80000000
s_cselect_b32 s22, 0, 640
s_lshl_b32 s14, s11, 3
s_add_u32 s14, s14, s13
s_lshl_b32 s14, s14, 3
s_add_u32 s14, s14, s12        ; G
s_lshl_b32 s15, s14, 6
s_mul_i32 s16, s3, {2*12288}
s_add_u32 s15, s15, s16
s_add_u32 s15, s15, {WS_Z1}
v_mul_u32_u24 v1, {64*12288}, v4
v_lshl_add_u32 v1, v3, 2, v1""")
    for tl in range(2):
        for r in range(4):
            if tl + r: a(f"v_add_u32 v{AD+4*tl+r}, {tl*12288+r*16*12288}, v1")
    a("s_waitcnt lgkmcnt(0)")
    addbase(a, 16, 8, "s15")
    for tl in range(2):
        for r in range(4):
            ad = AD + 4 * tl + r if tl + r else 1
            a(f"global_load_dword v{Z+4*tl+r}, v{ad}, s[16:17]")
    a(f"""s_lshl_b32 s15, s12, 4
v_add_u32 v5, s15, v3
v_mad_u32_u24 v5, v5, 5, s11   ; kd
v_mul_i32_i24 v5, s20, v5
v_add_u32 v5, s22, v5          ; col
v_lshlrev_b32 v5, 1, v5
s_lshl_b32 s15, s3, 4
s_add_u32 s15, s15, s13
v_lshl_add_u32 v6, v4, 9, s15
s_movk_i32 s23, 642""")
    for tl in range(2):
        for r in range(4):
            ad = AD + 4 * tl + r
            a(f"v_add_u32 v{ad}, {8*tl+128*r}, v6")
            a(f"v_mul_i32_i24 v{ad}, s20, v{ad}")
            a(f"v_and_b32 v{ad}, 2047, v{ad}")
            a(f"v_mad_u32_u24 v{ad}, v{ad}, s23, v5")
            a(f"global_load_ushort v{WR+4*tl+r}, v{ad}, s[4:5]")
            a(f"global_load_ushort v{WI+4*tl+r}, v{ad}, s[6:7]")
    a(f"""v_cvt_f32_u32 v{T}, v3
v_mul_f32 v{T}, {fl(1/256)}, v{T}       ; m/256
v_lshlrev_b32 v{T+1}, 6, v4
s_lshl_b32 s15, s3, 1
v_add_u32 v{T+2}, s15, v{T+1}
v_cvt_f32_u32 v{T+1}, v{T+1}
v_cvt_f32_u32 v{T+2}, v{T+2}
v_mul_f32 v{T+1}, v{T+1}, v{T}
v_mul_f32 v{T+2}, v{T+2}, v{T}""")
    for (dst, bs, off) in ((MA, T + 2, 0), (MA + 8, T + 2, 1), (F, T + 1, 0)):
        for r in range(4):
            o = 16 * r + off
            if o == 0: th = bs
            else:
                th = T + 3
                a(f"v_fmamk_f32 v{th}, v{T}, {fl(o)}, v{bs}")
            sincos(a, T + 4, T + 5, th)
            a(f"v_cvt_pk_bf16_f32 v{dst+r}, v{T+4}, v{T+5}")
            a(f"v_cvt_pk_bf16_f32 v{dst+4+r}, -v{T+5}, v{T+4}")
    a(f"""v_mul_u32_u24 v1, {IS}, v3
v_mad_u32_u24 v2, v4, 16, v1
s_mul_i32 s15, s3, {2*KS}
v_add_u32 v2, s15, v2
s_movk_i32 s15, {4*KS}
v_mad_u32_u24 v1, v4, s15, v1
s_lshl_b32 s15, s3, 3
v_add_u32 v1, s15, v1
v_and_b32 v5, 3, v3
v_lshlrev_b32 v5, 4, v5
v_and_b32 v6, 12, v3
v_add_u32 v5, v5, v6
v_lshl_add_u32 v5, v4, 6, v5
s_lshl_b32 s15, s14, 14
s_lshl_b32 s16, s3, 11
s_add_u32 s15, s15, s16
s_add_u32 s15, s15, {WS_Z2}""")
    addbase(a, 18, 8, "s15")
    DR, DI = T, T + 8
    P = T + 16
    def stage(mats):
        for tl in range(2):
            mfma(a, DR + 4 * tl, mats[tl], Z + 4 * tl, None)
            mfma(a, DI + 4 * tl, mats[tl] + 4, Z + 4 * tl, None)
    def exchange(buf):
        for r in range(4):
            for tl in range(2):
                a(f"v_cvt_pk_bf16_f32 v{P+2*r+tl}, v{DR+4*tl+r}, v{DI+4*tl+r}")
            a(f"ds_write_b64 v1, v[{P+2*r}:{P+2*r+1}] offset:{buf+r*KS}")
        a("s_waitcnt lgkmcnt(0)")
        a("s_barrier")
        for tl in range(2):
            a(f"ds_read_b128 v[{Z+4*tl}:{Z+4*tl+3}], v2 offset:{buf+tl*KS}")
    a("s_waitcnt vmcnt(16)")
    stage([MA, MA + 8])
    exchange(0)
    a("s_waitcnt vmcnt(0)")
    for j in range(8):
        a(f"v_lshlrev_b32 v{WR+j}, 16, v{WR+j}")
        a(f"v_lshlrev_b32 v{WI+j}, 16, v{WI+j}")
        a(f"v_xor_b32 v{WI+j}, s21, v{WI+j}")
    a("s_waitcnt lgkmcnt(0)")
    stage([F, F])
    for tl in range(2):
        for h in (0, 2):
            o = 4 * tl + h
            pk(a, "mul", P + h, DI + o, WI + o)
            pk(a, "mul", DI + o, DI + o, WR + o)
        for h in (0, 2):
            o = 4 * tl + h
            pk(a, "fma", DI + o, DR + o, WI + o, DI + o)
            pk(a, "fma", DR + o, DR + o, WR + o, P + h, "neg_lo:[0,0,1] neg_hi:[0,0,1]")
        for r in range(4):
            a(f"v_cvt_pk_bf16_f32 v{Z+4*tl+r}, v{DR+4*tl+r}, -v{DI+4*tl+r}")
    stage([MA, MA + 8])
    exchange(BUF)
    a("s_waitcnt lgkmcnt(0)")
    stage([F, F])
    for tl in range(2):
        for r in range(4):
            a(f"v_cvt_pk_bf16_f32 v{P+4*tl+r}, v{DR+4*tl+r}, v{DI+4*tl+r}")
            a(f"global_store_dword v5, v{P+4*tl+r}, s[18:19] offset:{1024*tl+256*r}")
    a("""k2_end:
s_endpgm""")
    return desc("k2_kernel", 88)

def k3(a):
    head(a, "k3_kernel")
    Y = 8
    X = 24
    GA, SB, CB, GB = 30, 40, 50, 60
    WRR = 70
    V = 76
    FB = 86
    TWC, TWS = 102, 106
    CM = 110
    T = 134
    RS = 576
    a(f"""s_cmp_ge_u32 s2, 256
s_cbranch_scc1 k3_end
s_load_dwordx2 s[4:5], s[0:1], 0
s_load_dwordx2 s[6:7], s[0:1], 32
s_load_dwordx2 s[8:9], s[0:1], 96
s_load_dwordx2 s[26:27], s[0:1], 80
v_lshrrev_b32 v1, 6, v0
v_and_b32 v0, 63, v0
v_readfirstlane_b32 s3, v1     ; wave
v_and_b32 v3, 15, v0           ; c16
v_lshrrev_b32 v4, 4, v0        ; g
s_lshr_b32 s11, s3, 1          ; k5
s_and_b32 s12, s3, 1           ; et
s_and_b32 s13, s2, 15
s_lshl_b32 s13, s13, 2
s_bfe_u32 s14, s2, 0x20004
s_add_u32 s13, s13, s14
s_lshl_b32 s13, s13, 2
s_lshr_b32 s14, s2, 6
s_add_u32 s13, s13, s14        ; pos
s_lshl_b32 s13, s13, 6
s_lshl_b32 s14, s11, 20
s_add_u32 s13, s13, s14
s_add_u32 s13, s13, {WS_Z2}
v_lshrrev_b32 v5, 2, v3
v_lshl_add_u32 v6, v5, 3, v4
v_lshlrev_b32 v6, 14, v6
v_and_b32 v7, 3, v3
v_lshl_add_u32 v6, v7, 4, v6
v_add_u32 v{T}, {4<<14}, v6
v_add_u32 v{T+1}, {32<<14}, v6
v_add_u32 v{T+2}, {36<<14}, v6
v_lshlrev_b32 v1, 2, v0
v_lshlrev_b32 v2, 3, v0
s_lshl_b32 s10, s3, 8
s_add_u32 s10, s10, s2         ; row
s_mul_i32 s28, s10, 1280
s_waitcnt lgkmcnt(0)""")
    addbase(a, 14, 8, "s13")
    a("s_cmp_ge_u32 s3, 6")
    a("s_cbranch_scc1 k3_noload")
    a(f"""global_load_dwordx4 v[{Y}:{Y+3}], v6, s[14:15]
global_load_dwordx4 v[{Y+4}:{Y+7}], v{T}, s[14:15]
global_load_dwordx4 v[{Y+8}:{Y+11}], v{T+1}, s[14:15]
global_load_dwordx4 v[{Y+12}:{Y+15}], v{T+2}, s[14:15]
k3_noload:""")
    addbase(a, 4, 4, "s28")
    addbase(a, 26, 26, "s28")
    for t in range(5): a(f"global_load_dword v{WRR+t}, v1, s[6:7] offset:{256*t}")
    for nm, sec in ((CB, 4), (SB, 3), (GA, 2), (GB, 5)):
        addbase(a, 16, 8, 2560 * sec)
        for t in range(5): a(f"global_load_dwordx2 v[{nm+2*t}:{nm+2*t+1}], v2, s[16:17] offset:{512*t}")
    for t in range(5): a(f"global_load_dword v{X+t}, v1, s[4:5] offset:{256*t}")
    a(f"""s_lshl_b32 s13, s12, 4
v_add_u32 v6, s13, v3
v_cvt_f32_u32 v6, v6                    ; e
v_mul_f32 v{T}, {fl(1/32)}, v6
v_lshlrev_b32 v{T+1}, 2, v4
v_cvt_f32_u32 v{T+1}, v{T+1}
v_mul_f32 v{T+2}, v{T+1}, v{T}
v_and_b32 v{T+8}, 1, v0
v_mul_u32_u24 v{T+8}, 0x8000, v{T+8}
v_lshl_or_b32 v{T+8}, v{T+8}, 16, v{T+8}""")
    for r in range(4):
        if r == 0: th = T + 2
        else:
            th = T + 3
            a(f"v_fmamk_f32 v{th}, v{T}, {fl(r)}, v{T+2}")
        sincos(a, T + 4, T + 5, th)
        a(f"v_cvt_pk_bf16_f32 v{FB+r}, v{T+4}, v{T+5}")
        a(f"v_cvt_pk_bf16_f32 v{FB+4+r}, -v{T+5}, v{T+4}")
    for j in range(8): a(f"v_xor_b32 v{FB+8+j}, v{T+8}, v{FB+j}")
    a(f"""v_cvt_f32_u32 v{T+9}, s11               ; k5
v_mul_f32 v{T}, {fl(1/640)}, v6
v_mul_f32 v{T+2}, v{T+9}, v{T}""")
    for r in range(4):
        if r == 0: th = T + 2
        else:
            th = T + 3
            a(f"v_fmamk_f32 v{th}, v{T}, {fl(5*r)}, v{T+2}")
        sincos(a, TWC + r, TWS + r, th)
    a(f"""v_lshl_add_u32 v{T+2}, v5, 8, s2        ; 256 s1 + s2 (nu=0)
v_mul_u32_u24 v{T}, v4, v{T+2}
v_lshl_add_u32 v{T+1}, v{T+2}, 2, v{T}
v_and_b32 v{T}, 2047, v{T}
v_and_b32 v{T+1}, 2047, v{T+1}
v_cvt_f32_u32 v{T}, v{T}
v_cvt_f32_u32 v{T+1}, v{T+1}
v_cvt_f32_u32 v{T+2}, v7
v_mul_f32 v{T+2}, {fl(1/20)}, v{T+2}    ; d1/20
v_mul_f32 v{T+3}, v{T+2}, v{T+9}        ; d1*k5/20
v_fmamk_f32 v{T}, v{T}, {fl(1/2048)}, v{T+3}
v_fmamk_f32 v{T+1}, v{T+1}, {fl(1/2048)}, v{T+3}
v_and_b32 v{T+8}, 1, v4
v_mul_u32_u24 v{T+8}, 0x8000, v{T+8}
v_lshl_or_b32 v{T+8}, v{T+8}, 16, v{T+8}""")
    for kh in range(2):
        for p in range(2):
            for u in range(2):
                j1 = 2 * p + u
                if j1 == 0: th = T + kh
                else:
                    th = T + 3
                    a(f"v_fmamk_f32 v{th}, v{T+2}, {fl(5*j1)}, v{T+kh}")
                sincos(a, T + 4 + u, T + 6 + u, th)
            a(f"v_cvt_pk_bf16_f32 v{CM+2*kh+p}, v{T+4}, v{T+5}")
            a(f"v_cvt_pk_bf16_f32 v{CM+4+2*kh+p}, v{T+6}, v{T+7}")
            a(f"v_cvt_pk_bf16_f32 v{CM+8+2*kh+p}, -v{T+6}, -v{T+7}")
    for j in range(12): a(f"v_xor_b32 v{CM+12+j}, v{T+8}, v{CM+j}")
    a(f"""v_mul_u32_u24 v6, {RS}, v5
v_mul_u32_u24 v7, 144, v7
v_add_u32 v6, v6, v7
v_lshl_add_u32 v6, v4, 4, v6
s_lshl_b32 s13, s11, 1
s_max_u32 s13, s13, 1
s_sub_u32 s13, s13, 1
s_mul_i32 s13, s13, {8*RS}
s_lshl_b32 s14, s12, 6
s_add_u32 s13, s13, s14
v_add_u32 v6, s13, v6
v_mul_u32_u24 v7, 144, v4
v_lshl_add_u32 v7, v3, 3, v7
s_mul_i32 s13, s3, {RS}
v_add_u32 v7, s13, v7
s_mov_b32 s16, {fl(2*C1)}
s_mov_b32 s18, {fl(2*C2)}
s_mov_b32 s20, {fl(2*S1)}
s_mov_b32 s22, {fl(2*S2)}
s_cmp_ge_u32 s3, 6
s_cbranch_scc1 k3_skipb
s_waitcnt vmcnt(30)""")
    TR, TI = T, T + 8
    for q in range(2):
        for kh in range(2):
            y = Y + (kh * 2 + q) * 4
            mfma(a, TR + 4 * kh, y, FB + 8 * q, None if q == 0 else TR + 4 * kh)
            mfma(a, TI + 4 * kh, y, FB + 8 * q + 4, None if q == 0 else TI + 4 * kh)
    AR, AI = Y, Y + 4
    for kh in range(2):
        cmul_tw(a, TR + 4 * kh, TI + 4 * kh, TWC, TWS, T + 16)
        for p in range(2):
            a(f"v_cvt_pk_bf16_f32 v{AR+2*kh+p}, v{TR+4*kh+2*p}, v{TR+4*kh+2*p+1}")
            a(f"v_cvt_pk_bf16_f32 v{AI+2*kh+p}, v{TI+4*kh+2*p}, v{TI+4*kh+2*p+1}")
    VR, VI = T + 16, T + 24
    for nu in range(2): mfma(a, VR + 4 * nu, AR, CM + 12 * nu, None)
    for nu in range(2): mfma(a, VR + 4 * nu, AI, CM + 12 * nu + 4, VR + 4 * nu)
    a("s_cmp_eq_u32 s11, 0")
    a("s_cbranch_scc1 k3_real")
    for nu in range(2): mfma(a, VI + 4 * nu, AI, CM + 12 * nu, None)
    for nu in range(2): mfma(a, VI + 4 * nu, AR, CM + 12 * nu + 8, VI + 4 * nu)
    for nu in range(2): a(f"ds_write_b128 v6, v[{VI+4*nu}:{VI+4*nu+3}] offset:{8*RS+4*nu*RS}")
    a("k3_real:")
    for nu in range(2): a(f"ds_write_b128 v6, v[{VR+4*nu}:{VR+4*nu+3}] offset:{4*nu*RS}")
    a("k3_skipb:")
    a("s_waitcnt vmcnt(15)")
    for t in range(5):
        a(f"v_lshlrev_b32 v{V+2*t}, 16, v{WRR+t}")
        a(f"v_and_b32 v{V+2*t+1}, 0xffff0000, v{WRR+t}")
    pk(a, "mul", T + 2, SB, V)
    for t in range(1, 5): pk(a, "fma", T + 2, SB + 2 * t, V + 2 * t, T + 2)
    for t in range(5): pk(a, "mul", V + 2 * t, V + 2 * t, CB + 2 * t)
    pk(a, "add", T, V, V + 2)
    for t in range(2, 5): pk(a, "add", T, T, V + 2 * t)
    a(f"v_add_f32 v{T}, v{T}, v{T+1}")
    a(f"v_add_f32 v{T+2}, v{T+2}, v{T+3}")
    wave_sum(a, [T, T + 2], [30, 31])
    a("""s_waitcnt lgkmcnt(0)
s_barrier""")
    U = 8
    for p in range(5): a(f"ds_read_b64 v[{U+2*p}:{U+2*p+1}], v7 offset:{p*8*RS}")
    X1 = FB
    a("s_waitcnt vmcnt(0)")
    for t in range(5):
        a(f"v_lshlrev_b32 v{X1+2*t}, 16, v{X+t}")
        a(f"v_and_b32 v{X1+2*t+1}, 0xffff0000, v{X+t}")
    a("s_waitcnt lgkmcnt(0)")
    bs = "op_sel_hi:[1,0,1]"
    pk(a, "add", T, U + 2, U + 6)
    pk(a, "fma", T + 2, U + 2, "s[16:17]", U, bs)
    pk(a, "fma", T + 4, U + 2, "s[18:19]", U, bs)
    pk(a, "mul", T + 6, U + 4, "s[20:21]", None, "op_sel_hi:[1,0]")
    pk(a, "mul", T + 8, U + 4, "s[22:23]", None, "op_sel_hi:[1,0]")
    pk(a, "fma", T, T, "2.0", U, bs)
    pk(a, "fma", T + 2, U + 6, "s[18:19]", T + 2, bs)
    pk(a, "fma", T + 4, U + 6, "s[16:17]", T + 4, bs)
    pk(a, "fma", T + 6, U + 8, "s[22:23]", T + 6, bs)
    pk(a, "fma", T + 8, U + 8, "s[20:21]", T + 8, bs + " neg_lo:[1,0,0] neg_hi:[1,0,0]")
    ng = "neg_lo:[0,1] neg_hi:[0,1]"
    pk(a, "add", T + 10, T + 2, T + 6)
    pk(a, "add", T + 12, T + 4, T + 8)
    pk(a, "add", T + 14, T + 4, T + 8, None, ng)
    pk(a, "add", T + 16, T + 2, T + 6, None, ng)
    ys = [T, T + 10, T + 12, T + 14, T + 16]
    for t in range(5): pk(a, "fma", X1 + 2 * t, ys[t], GA + 2 * t, X1 + 2 * t)
    pk(a, "add", T, X1, X1 + 2)
    pk(a, "mul", T + 2, X1, X1)
    pk(a, "mul", T + 4, X1, V)
    for t in range(1, 5):
        if t >= 2: pk(a, "add", T, T, X1 + 2 * t)
        pk(a, "fma", T + 2, X1 + 2 * t, X1 + 2 * t, T + 2)
        pk(a, "fma", T + 4, X1 + 2 * t, V + 2 * t, T + 4)
    for j in (0, 2, 4): a(f"v_add_f32 v{T+j}, v{T+j}, v{T+j+1}")
    wave_sum(a, [T, T + 2, T + 4], [32, 33, 34])
    a(f"""v_mov_b32 v{T}, {fl(1/640)}
v_mul_f32 v{T+1}, s32, v{T}           ; mean
v_mul_f32 v{T+2}, s33, v{T}
v_fma_f32 v{T+2}, -v{T+1}, v{T+1}, v{T+2}
v_max_f32 v{T+2}, 0, v{T+2}
v_add_f32 v{T+2}, {fl(1e-5)}, v{T+2}
v_rsq_f32 v{T+2}, v{T+2}
v_mov_b32 v{T+6}, s34
v_fma_f32 v{T+6}, -v{T+1}, s30, v{T+6}
v_mul_f32_e64 v{T+4}, -v{T+1}, v{T+2}
v_fma_f32 v{T+6}, v{T+6}, v{T+2}, s31      ; r
s_lshl_b32 s13, s3, 2
v_mov_b32 v{T+7}, s13
ds_write_b32 v{T+7}, v{T+6} offset:{40*RS}""")
    H2 = 8
    for t in range(5): pk(a, "fma", H2 + 2 * t, X1 + 2 * t, T + 2, T + 4, "op_sel_hi:[1,0,0]")
    for t in range(5): pk(a, "fma", H2 + 2 * t, H2 + 2 * t, CB + 2 * t, SB + 2 * t)
    for t in range(5): pk(a, "fma", X1 + 2 * t, H2 + 2 * t, GB + 2 * t, X1 + 2 * t)
    for t in range(5):
        a(f"v_cvt_pk_bf16_f32 v{X+t}, v{X1+2*t}, v{X1+2*t+1}")
        a(f"global_store_dword v1, v{X+t}, s[26:27] offset:{256*t}")
    a(f"""v_and_b32 v{T+7}, 7, v0
v_lshlrev_b32 v{T+7}, 2, v{T+7}
s_waitcnt lgkmcnt(0)
s_barrier
ds_read_b32 v{T+8}, v{T+7} offset:{40*RS}
s_waitcnt lgkmcnt(0)
v_cmp_gt_f32 vcc, v{T+8}, v{T+6}
s_cbranch_vccnz k3_end
v_cmp_ge_f32 vcc, v{T+8}, v{T+6}
s_ff1_i32_b32 s13, vcc_lo
s_cmp_lg_u32 s13, s3
s_cbranch_scc1 k3_end
s_mul_i32 s13, s2, 2560
s_add_u32 s13, s13, {WS_H2C}""")
    addbase(a, 14, 8, "s13")
    addbase(a, 16, 14, WS_OUTC - WS_H2C)
    for t in range(5):
        a(f"global_store_dwordx2 v2, v[{H2+2*t}:{H2+2*t+1}], s[14:15] offset:{512*t}")
        a(f"global_store_dwordx2 v2, v[{X1+2*t}:{X1+2*t+1}], s[16:17] offset:{512*t}")
    a(f"""s_lshl_b32 s13, s2, 2
s_add_u32 s13, s13, {WS_RC}
v_mov_b32 v{T+7}, s13
v_mov_b32 v{T+8}, s10
s_mov_b64 exec, 1
global_store_dword v{T+7}, v{T+6}, s[8:9]
global_store_dword v{T+7}, v{T+8}, s[8:9] offset:{WS_IC-WS_RC}
k3_end:
s_endpgm""")
    return desc("k3_kernel", 168)

def argmax256(a, R, lane4, sws, sout, smax):
    m = R + 4
    a(f"v_max_f32 v{m}, v{R}, v{R+1}")
    a(f"v_max3_f32 v{m}, v{m}, v{R+2}, v{R+3}")
    for r in (8, 4, 2, 1): a(f"v_max_f32_dpp v{m}, v{m}, v{m} row_ror:{r} row_mask:0xf bank_mask:0xf")
    a(f"v_max_f32_dpp v{m}, v{m}, v{m} row_bcast:15 row_mask:0xa bank_mask:0xf")
    a(f"v_max_f32_dpp v{m}, v{m}, v{m} row_bcast:31 row_mask:0xc bank_mask:0xf")
    a(f"v_readlane_b32 s{smax}, v{m}, 63")
    a(f"v_mov_b32 v{m}, 3")
    for j in (2, 1, 0):
        a(f"v_cmp_eq_f32 vcc, s{smax}, v{R+j}")
        a(f"v_cndmask_b32 v{m}, v{m}, {j}, vcc")
    a(f"v_max_f32 v{R}, v{R}, v{R+1}")
    a(f"v_max3_f32 v{R}, v{R}, v{R+2}, v{R+3}")
    a(f"v_cmp_eq_f32 vcc, s{smax}, v{R}")
    a(f"s_ff1_i32_b64 s{sout}, vcc")
    a(f"s_and_b32 s{sout}, s{sout}, 63")
    a(f"v_readlane_b32 s{sws}, v{m}, s{sout}")
    a(f"s_lshl_b32 s{sout}, s{sout}, 2")
    a(f"s_add_u32 s{sout}, s{sout}, s{sws}")

def k4(a):
    head(a, "k4_kernel")
    a(f"""s_cmp_ge_u32 s2, 192
s_cbranch_scc1 k4_end
s_load_dwordx4 s[4:7], s[0:1], 40
s_load_dwordx2 s[8:9], s[0:1], 96
s_and_b32 s3, s2, 7
s_mul_i32 s3, s3, 24
s_lshr_b32 s10, s2, 3
s_add_u32 s3, s3, s10          ; colgrp8
v_lshrrev_b32 v2, 7, v0
v_and_b32 v1, 127, v0          ; k0
v_readfirstlane_b32 s11, v2
s_lshl_b32 s10, s3, 4
v_mul_u32_u24 v2, 3072, v1
v_add_u32 v2, s10, v2
v_lshlrev_b32 v1, 2, v1
v_and_b32 v7, 63, v0
v_lshlrev_b32 v7, 4, v7
v_add_u32 v7, {WS_RC}, v7""")
    for i in range(1, 5): a(f"v_add_u32 v{2+i}, {i*128*3072}, v2")
    a("""s_waitcnt lgkmcnt(0)
s_cmp_eq_u32 s11, 0
s_cselect_b32 s4, s4, s6
s_cselect_b32 s5, s5, s7
global_load_dwordx4 v[8:11], v7, s[8:9]""")
    for i in range(5): a(f"global_load_dwordx4 v[{16+4*i}:{19+4*i}], v{2+i}, s[4:5]")
    a("s_waitcnt vmcnt(5)")
    argmax256(a, 8, None, 12, 13, 14)
    a(f"""s_mul_i32 s13, s13, 2560
s_add_u32 s13, s13, {WS_H2C}""")
    addbase(a, 16, 8, "s13")
    for i in range(5): a(f"global_load_dword v{8+i}, v1, s[16:17] offset:{512*i}")
    for i in range(5):
        a(f"s_waitcnt vmcnt({4-i})")
        rnd_bf16(a, 8 + i)
        gemv_acc(a, 40, 16 + 4 * i, 8 + i, i == 0, 14)
    reduce8(a, 40)
    a(f"""v_lshrrev_b32 v1, 4, v0
v_lshlrev_b32 v1, 3, v1
ds_write_b64 v1, v[40:41]
s_waitcnt lgkmcnt(0)
s_barrier
v_cmp_gt_u32 vcc, 8, v0
s_and_saveexec_b64 s[12:13], vcc
s_cbranch_execz k4_end
v_lshlrev_b32 v1, 2, v0
ds_read2_b32 v[4:5], v1 offset0:0 offset1:8
ds_read2_b32 v[6:7], v1 offset0:16 offset1:24
s_lshl_b32 s10, s3, 5
s_add_u32 s10, s10, {WS_HID}
v_add_u32 v1, s10, v1
s_waitcnt lgkmcnt(0)
v_add_f32 v4, v4, v5
v_add_f32 v6, v6, v7""")
    sigmoid(a, 5, 4)
    a("""v_mul_f32 v4, v4, v6
v_mul_f32 v4, v4, v5
global_store_dword v1, v4, s[8:9]
k4_end:
s_endpgm""")
    return desc("k4_kernel", 48)

def k5(a):
    head(a, "k5_kernel")
    a(f"""s_cmp_ge_u32 s2, 80
s_cbranch_scc1 k5_end
s_load_dwordx2 s[4:5], s[0:1], 56
s_load_dwordx2 s[6:7], s[0:1], 80
s_load_dwordx2 s[8:9], s[0:1], 96
s_and_b32 s3, s2, 7
s_mul_i32 s3, s3, 10
s_lshr_b32 s10, s2, 3
s_add_u32 s3, s3, s10          ; colgrp8
s_lshl_b32 s10, s3, 4
v_mul_u32_u24 v2, 1280, v0
v_add_u32 v2, s10, v2
v_lshlrev_b32 v1, 2, v0
v_and_b32 v50, 63, v0
v_lshlrev_b32 v50, 4, v50
v_add_u32 v50, {WS_RC}, v50""")
    for i in range(1, 6): a(f"v_add_u32 v{2+i}, {i*256*1280}, v2")
    a("s_waitcnt lgkmcnt(0)")
    addbase(a, 16, 8, WS_HID + 2048)
    a("global_load_dwordx4 v[52:55], v50, s[8:9]")
    for i in range(6): a(f"global_load_dword v{8+i}, v1, s[16:17] offset:{1024*i-2048}")
    for i in range(6): a(f"global_load_dwordx4 v[{16+4*i}:{19+4*i}], v{2+i}, s[4:5]")
    a("s_waitcnt vmcnt(12)")
    argmax256(a, 52, None, 12, 13, 14)
    a(f"""s_lshl_b32 s15, s13, 2
s_add_u32 s15, s15, {WS_IC}
v_mov_b32 v50, s15
global_load_dword v52, v50, s[8:9]
s_mul_i32 s13, s13, 2560
s_lshl_b32 s10, s3, 5
s_add_u32 s13, s13, s10
s_add_u32 s13, s13, {WS_OUTC}
v_and_b32 v50, 7, v0
v_lshlrev_b32 v50, 2, v50
v_add_u32 v51, s13, v50
global_load_dword v53, v51, s[8:9]
s_add_u32 s10, s10, {5*2560}
v_add_u32 v51, s10, v50
global_load_dword v54, v51, s[8:9]""")
    for i in range(6):
        a(f"s_waitcnt vmcnt({8-i})")
        gemv_acc(a, 40, 16 + 4 * i, 8 + i, i == 0, 14)
    reduce8(a, 40)
    a(f"""v_lshrrev_b32 v1, 4, v0
v_lshlrev_b32 v1, 3, v1
ds_write_b64 v1, v[40:41]
s_waitcnt lgkmcnt(0)
s_barrier
v_cmp_gt_u32 vcc, 8, v0
s_and_saveexec_b64 s[12:13], vcc
s_cbranch_execz k5_end
ds_read2_b32 v[4:5], v50 offset0:0 offset1:8
ds_read2_b32 v[6:7], v50 offset0:16 offset1:24
v_mov_b32 v8, s14""")
    sigmoid(a, 9, 8)
    a(f"""s_lshl_b32 s10, s3, 4
v_lshl_add_u32 v1, v0, 1, s10
s_waitcnt vmcnt(0) lgkmcnt(0)
v_mul_u32_u24 v52, 1280, v52
v_add_u32 v1, v1, v52
v_add_f32 v4, v4, v5
v_add_f32 v6, v6, v7
v_add_f32 v4, v4, v6
v_mul_f32 v4, v4, v9
v_fmac_f32 v53, v4, v54
v_cvt_pk_bf16_f32 v53, v53, v53
global_store_short v1, v53, s[6:7]
k5_end:
s_endpgm""")
    return desc("k5_kernel", 60)

def build(extra_empty=0):
    hdr = """; adaLN + GFNet spectral filter + mixture-of-depths MLP (generated by gen1.py)
; @launch kernel=k0_kernel grid=(240,1,1) block=(256,1,1) lds=256
; @launch kernel=k1_kernel grid=(256,1,1) block=(512,1,1) lds=10880
; @launch kernel=k2_kernel grid=(192,1,1) block=(512,1,1) lds=40960
; @launch kernel=k3_kernel grid=(256,1,1) block=(512,1,1) lds=23104
; @launch kernel=k4_kernel grid=(192,1,1) block=(256,1,1) lds=256
; @launch kernel=k5_kernel grid=(80,1,1) block=(256,1,1) lds=256
"""
    hdr += "; @launch kernel=ke_kernel grid=(256,1,1) block=(256,1,1) lds=0\n" * extra_empty
    hdr += """.amdgcn_target "amdgcn-amd-amdhsa--gfx950"
.text
"""
    a = Asm()
    ds = [k(a) for k in (k0, k1, k2, k3, k4, k5)]
    if extra_empty:
        head(a, "ke_kernel"); a("s_endpgm"); ds.append(desc("ke_kernel", 8))
    return hdr + a.finalize() + '.section .rodata,"a"\n' + "".join(ds)

if __name__ == "__main__":
    out = sys.argv[1] if len(sys.argv) > 1 else "v1.s"
    ee = int(sys.argv[2]) if len(sys.argv) > 2 else 0
    open(out, "w").write(build(ee))
```

```python
import re, struct, math

def f2u(x):
    return struct.unpack('<I', struct.pack('<f', x))[0]
def fl(x):
    return "0x%08x" % f2u(x)

REG_RE = re.compile(r'(?<![\w.])([vas])(\d+)(?![\w\[])|(?<![\w.])([vas])\[(\d+):(\d+)\]|(?<![\w.])(vcc|exec|m0)(_lo|_hi)?(?![\w])')

def regs_of(tok):
    out = []
    for m in REG_RE.finditer(tok):
        if m.group(1):
            out.append(m.group(1) + m.group(2))
        elif m.group(3):
            out += [m.group(3) + str(i) for i in range(int(m.group(4)), int(m.group(5)) + 1)]
        else:
            out.append(m.group(6))
    return out

TRANS = ('v_exp_f32', 'v_log_f32', 'v_rcp_f32', 'v_rsq_f32', 'v_sqrt_f32', 'v_sin_f32', 'v_cos_f32', 'v_rcp_iflag_f32')
NODST_S = ('s_cmp', 's_branch', 's_cbranch', 's_waitcnt', 's_barrier', 's_setprio', 's_sleep', 's_nop', 's_endpgm', 's_bitcmp', 's_setpc', 's_setreg', 's_sethalt', 's_wakeup')

class Ins:
    def __init__(self, text):
        self.text = text
        t = text.split(';')[0].strip()
        self.label = None
        self.op = None
        self.w = set(); self.r = set()
        if not t or t.startswith('.'):
            if t.endswith(':'):
                self.label = t[:-1]
            return
        if t.endswith(':'):
            self.label = t[:-1]; return
        parts = t.split(None, 1)
        op = parts[0]; self.op = op
        rest = parts[1] if len(parts) > 1 else ''
        ops = []; depth = 0; cur = ''
        for ch in rest:
            if ch in '[(': depth += 1
            if ch in '])': depth -= 1
            if ch == ',' and depth == 0:
                ops.append(cur.strip()); cur = ''
            else:
                cur += ch
        if cur.strip(): ops.append(cur.strip())
        self.mods = ''
        if ops:
            last = ops[-1].split(None, 1)
            if len(last) > 1 and not op.startswith('s_waitcnt'):
                ops[-1] = last[0]; self.mods = last[1]
        self.ops = ops
        R = [regs_of(o) for o in ops]
        base = re.sub(r'_(e32|e64|dpp|sdwa)$', '', op)
        self.base = base
        self.valu = op.startswith('v_')
        self.mfma = op.startswith('v_mfma')
        self.trans = base in TRANS
        self.dpp = op.endswith('_dpp') or 'row_' in self.mods or 'quad_perm' in self.mods or 'wave_' in self.mods
        self.ds = op.startswith('ds_')
        self.vmem = op.startswith(('buffer_', 'global_', 'flat_'))
        self.smem = op.startswith(('s_load', 's_buffer_load', 's_memtime', 's_memrealtime', 's_atomic'))
        self.salu = op.startswith('s_') and not self.smem
        self.dot = base.startswith('v_dot')
        self.ldsdma = False
        self.store_data = set()
        allr = lambda L: set(x for l in L for x in l)
        if self.valu:
            if base == 'v_nop': return
            self.w = set(R[0]); self.r = allr(R[1:])
            if base.startswith('v_cmpx'): self.w.add('exec')
            if base in ('v_add_co_u32', 'v_sub_co_u32', 'v_subrev_co_u32', 'v_addc_co_u32', 'v_subb_co_u32', 'v_mad_u64_u32', 'v_div_scale_f32'):
                self.w |= set(R[1]); self.r = allr(R[2:])
            if base in ('v_fmac_f32', 'v_pk_fmac_f16', 'v_dot2c_f32_bf16', 'v_writelane_b32') or self.dpp or op.endswith('_sdwa'):
                self.r |= set(R[0])
            if base.startswith('v_permlane') or base == 'v_swap_b32':
                self.w = allr(R); self.r = allr(R)
            if self.mfma:
                self.D = R[0]; self.A = R[1]; self.B = R[2]; self.C = R[3]
                self.passes = 8 if '32x32x16' in op else 4
                assert '16x16x32' in op or '32x32x16' in op, op
        elif self.ds:
            if op.startswith(('ds_read', 'ds_bpermute', 'ds_permute', 'ds_swizzle')) or '_rtn' in op:
                self.w = set(R[0]); self.r = allr(R[1:])
                if 'd16' in op: self.r |= set(R[0])
            else:
                self.r = allr(R)
        elif self.vmem:
            if op in ('buffer_wbl2', 'buffer_inv'): return
            if '_lds_' in op or re.search(r'\blds\b', self.mods):
                self.ldsdma = True; self.r = allr(R) | {'m0'}
            elif '_load' in op:
                self.w = set(R[0]); self.r = allr(R[1:])
                if 'd16' in op: self.r |= set(R[0])
            elif 'atomic' in op:
                self.r = allr(R)
                if re.search(r'\bsc0\b', self.mods):
                    self.w = set(R[0])
                    if op.startswith('global'): self.r = allr(R[1:])
            else:
                self.r = allr(R)
                if op.endswith(('x3', 'x4')):
                    self.store_data = set(R[1] if op.startswith('global') else R[0])
        elif self.smem:
            self.w = set(R[0]); self.r = allr(R[1:])
        else:
            if op.startswith(NODST_S):
                self.r = allr(R)
            else:
                self.w = set(R[0]); self.r = allr(R[1:])
                if 'saveexec' in op: self.w.add('exec'); self.r.add('exec')
                if op.startswith(('s_addk', 's_mulk', 's_cmov', 's_bitset')): self.r |= set(R[0])
    def states(self):
        if self.op is None: return 0
        if self.op == 's_nop': return int(self.ops[0], 0) + 1
        return 1

def need(p, c):
    n = 0
    vw = set(x for x in p.w if x[0] in 'va' and x != 'vcc')
    sw = set(x for x in p.w if x[0] == 's' or x == 'vcc')
    if p.valu and not p.mfma:
        if c.mfma and (vw & c.r): n = max(n, 3 if p.dot else 2)
        if p.trans and c.valu and not c.trans and (vw & c.r): n = max(n, 1)
        if c.valu and (sw & c.r):
            n = max(n, 2)
            if c.base in ('v_readlane_b32', 'v_writelane_b32') and (sw & set(regs_of(c.ops[2]))): n = max(n, 4)
        if c.vmem and (sw & c.r): n = max(n, 5)
        if c.valu and c.dpp and (vw & c.r): n = max(n, 2)
        if c.base in ('v_readlane_b32', 'v_readfirstlane_b32') and (vw & c.r): n = max(n, 1)
        if c.valu and c.base.startswith('v_permlane') and (vw & c.r): n = max(n, 2)
        if 'exec' in p.w:
            if c.valu and c.dpp: n = max(n, 5)
            if c.mfma or c.base in ('v_readlane_b32', 'v_readfirstlane_b32', 'v_writelane_b32') or c.base.startswith('v_permlane'): n = max(n, 4)
            if c.valu and 'exec' in c.r: n = max(n, 2)
        if p.dot and c.valu and (vw & (c.r | c.w)):
            if c.base == p.base and not (vw & set(regs_of(c.ops[1]) + regs_of(c.ops[2]))): pass
            else: n = max(n, 3)
        if (p.op.endswith('_sdwa') and 'dst_sel:DWORD' not in p.mods) and c.valu and (vw & (c.r | c.w)): n = max(n, 1)
    if p.mfma:
        D = set(p.D)
        big = {4: 8, 8: 12}[p.passes]
        if c.mfma:
            if D & (set(c.A) | set(c.B)): n = max(n, big)
            if D & set(c.C):
                if not (c.C == p.D and c.passes == p.passes): n = max(n, big - 2)
            elif D & set(c.D): n = max(n, big)
        elif (c.valu or c.vmem or c.ds) and (D & (c.r | c.w)): n = max(n, big)
        if c.valu and not c.mfma and (set(p.C) & c.w): n = max(n, {4: 3, 8: 7}[p.passes])
    if p.store_data and (p.store_data & c.w):
        n = max(n, 2 if c.valu else 1)
    if p.salu and 'm0' in p.w and (c.ldsdma or 'addtid' in (c.op or '')): n = max(n, 1)
    return n

class Asm:
    def __init__(self):
        self.lines = []
    def __call__(self, text):
        for l in text.split('\n'):
            self.lines.append(l.strip())
    def finalize(self, check_wait=True):
        ins = [Ins(l) for l in self.lines]
        out = []
        targets = {}
        for i, x in enumerate(ins):
            if x.op and x.op.startswith(('s_branch', 's_cbranch')):
                targets.setdefault(x.ops[0], []).append(i)
        extra = [0] * len(ins)
        def required(i):
            c = ins[i]; worst = 0
            stack = [(i - 1, 0)]; seen = set()
            while stack:
                j, dist = stack.pop()
                while j >= 0 and dist < 13:
                    if (j, dist) in seen: break
                    seen.add((j, dist))
                    p = ins[j]
                    if p.label:
                        for b in targets.get(p.label, []):
                            stack.append((b - 1, dist + 1 + extra[b]))
                        j -= 1; continue
                    if p.op is None:
                        j -= 1; continue
                    if p.op in ('s_branch', 's_endpgm', 's_setpc_b64'): break
                    worst = max(worst, need(p, c) - dist)
                    dist += p.states() + extra[j]
                    j -= 1
            return worst
        for i, x in enumerate(ins):
            if x.op and x.op != 's_nop':
                extra[i] = max(0, required(i))
        res = []
        for i, x in enumerate(ins):
            if extra[i]: res.append('    s_nop %d' % (extra[i] - 1))
            res.append(x.text if (x.label or x.op is None) else '    ' + x.text)
        if check_wait: self.check_waits(ins)
        self.nops = sum(extra)
        return '\n'.join(res) + '\n'
    def check_waits(self, ins):
        vm = []; lg = []
        for x in ins:
            if x.op is None:
                continue
            if x.op in ('s_endpgm', 's_branch'):
                if x.op == 's_endpgm': vm = []; lg = []
                continue
            if x.op == 's_waitcnt':
                m = re.search(r'vmcnt\((\d+)\)', x.text)
                if m:
                    n = int(m.group(1)); vm = vm[max(0, len(vm) - n):] if n else []
                    if n > len(vm): pass
                m = re.search(r'lgkmcnt\((\d+)\)', x.text)
                if m:
                    n = int(m.group(1))
                    if n == 0: lg = []
                    elif not any(k == 's' for k, _ in lg): lg = lg[len(lg) - n:] if n < len(lg) else lg
                continue
            touch = x.r | x.w
            for q, nm in ((vm, 'vmcnt'), (lg, 'lgkmcnt')):
                for k, d in q:
                    if d & touch and not ('d16' in x.op and k != 's' and not (d & (x.r - x.w))):
                        raise Exception('missing %s wait before: %s (regs %s)' % (nm, x.text, sorted(d & touch)))
            if x.vmem and x.op not in ('buffer_wbl2', 'buffer_inv'): vm.append(('v', set(x.w)))
            elif x.op in ('buffer_wbl2', 'buffer_inv'): vm.append(('v', set()))
            elif x.ds: lg.append(('d', set(x.w)))
            elif x.smem: lg.append(('s', set(x.w)))

WS_STAMP = 16 << 20
def add_stamps(a, ws=8, sb=70, swave=69, pick_wave=0):
    out = []; k = -1; n = 0; name = None; first = False; desc = []
    for ln in a.lines:
        m = re.match(r'^(k(\d+))_kernel:', ln)
        if m:
            name = m.group(1); k = int(m.group(2)); n = 0; first = True
            out.append(ln); continue
        if first and ln.startswith('s_cbranch_scc1'):
            out.append('s_cbranch_scc1 %s_exit' % name)
            out.append('s_memrealtime s[%d:%d]' % (sb, sb + 1)); n = 1
            for j in range(1, 15): out.append('s_mov_b32 s%d, 0' % (sb + 2 * j))
            out.append('v_readfirstlane_b32 s%d, v0' % swave)
            out.append('s_lshr_b32 s%d, s%d, 6' % (swave, swave))
            first = False; continue
        if name and ln == name + '_end:':
            out.append(ln)
            out.append('s_waitcnt vmcnt(0)')
            out.append('s_memrealtime s[%d:%d]' % (sb + 30, sb + 31))
            out.append('s_waitcnt lgkmcnt(0)')
            out.append('s_cmp_lg_u32 s%d, %d' % (swave, pick_wave))
            out.append('s_cbranch_scc1 %s_exit' % name)
            out.append('s_lshl_b32 s68, s2, 6')
            out.append('s_add_u32 s68, s68, %d' % (WS_STAMP + k * 512 * 64))
            out.append('s_mov_b64 exec, 1')
            out.append('v_mov_b32 v2, s68')
            for j in range(16):
                out.append('v_mov_b32 v3, s%d' % (sb + 2 * j))
                out.append('global_store_dword v2, v3, s[%d:%d] offset:%d' % (ws, ws + 1, 4 * j))
            out.append('%s_exit:' % name)
            continue
        if ln.startswith('s_waitcnt vmcnt') and n < 14 and name:
            out.append('s_memrealtime s[%d:%d]' % (sb + 2 * n, sb + 2 * n + 1)); desc.append((k, n, 'before ' + ln)); n += 1
        out.append(ln)
        if (ln.startswith('s_waitcnt vmcnt') or ln.startswith('s_barrier') or ln.startswith('; stamp')) and n < 15 and name:
            out.append('s_memrealtime s[%d:%d]' % (sb + 2 * n, sb + 2 * n + 1)); desc.append((k, n, 'after ' + ln)); n += 1
    a.lines = out
    for d in desc: print(d)
```

```python
import math, sys
from asmlib import *

NAME = "adaLN_cond__spectral_gfnet__moe_arch_mod__prompt"
WS_MOD = 0
WS_RC = 16384
WS_IC = 17408
WS_HID = 20480
WS_H2C = 32768
WS_OUTC = WS_H2C + 256 * 2560
WS_Z1 = 2 << 20
WS_Z2 = 6 << 20
LOG2E = math.log2(math.e)
C1 = math.cos(2 * math.pi / 5); C2 = math.cos(4 * math.pi / 5)
S1 = math.sin(2 * math.pi / 5); S2 = math.sin(4 * math.pi / 5)

def head(a, name):
    a(f""".globl {name}
.p2align 8
.type {name},@function
{name}:""")

def desc(name, vgpr, sgpr=102):
    vg = (vgpr + 3) // 4 * 4
    return f""".p2align 6
.amdhsa_kernel {name}
  .amdhsa_next_free_vgpr {vg}
  .amdhsa_next_free_sgpr {sgpr}
  .amdhsa_accum_offset {vg}
  .amdhsa_group_segment_fixed_size 0
  .amdhsa_kernarg_size 104
  .amdhsa_user_sgpr_count 2
  .amdhsa_user_sgpr_kernarg_segment_ptr 1
  .amdhsa_system_sgpr_workgroup_id_x 1
  .amdhsa_float_denorm_mode_32 3
.end_amdhsa_kernel
"""

def addbase(a, d, s, off):
    a(f"s_add_u32 s{d}, s{s}, {off}")
    a(f"s_addc_u32 s{d+1}, s{s+1}, 0")

def reduce8(a, acc):
    for j in range(4): a(f"v_permlane32_swap_b32 v{acc+j}, v{acc+4+j}")
    for j in range(4): a(f"v_add_f32 v{acc+j}, v{acc+j}, v{acc+4+j}")
    for j in range(2): a(f"v_permlane16_swap_b32 v{acc+j}, v{acc+2+j}")
    for j in range(2): a(f"v_add_f32 v{acc+j}, v{acc+j}, v{acc+2+j}")
    for r in (8, 4, 2, 1):
        for j in range(2):
            a(f"v_add_f32_dpp v{acc+j}, v{acc+j}, v{acc+j} row_ror:{r} row_mask:0xf bank_mask:0xf")

def gemv_acc(a, acc, w, s, first, t):
    for j in range(4):
        a(f"v_lshlrev_b32 v{t}, 16, v{w+j}")
        a(f"v_and_b32 v{t+1}, 0xffff0000, v{w+j}")
        if first:
            a(f"v_mul_f32 v{acc+2*j}, v{t}, v{s}")
            a(f"v_mul_f32 v{acc+2*j+1}, v{t+1}, v{s}")
        else:
            a(f"v_fmac_f32 v{acc+2*j}, v{t}, v{s}")
            a(f"v_fmac_f32 v{acc+2*j+1}, v{t+1}, v{s}")

def sigmoid(a, d, s):
    a(f"v_mul_f32 v{d}, {fl(-LOG2E)}, v{s}")
    a(f"v_exp_f32 v{d}, v{d}")
    a(f"v_add_f32 v{d}, 1.0, v{d}")
    a(f"v_rcp_f32 v{d}, v{d}")

def rnd_bf16(a, r):
    a(f"v_cvt_pk_bf16_f32 v{r}, v{r}, v{r}")
    a(f"v_and_b32 v{r}, 0xffff0000, v{r}")

def k0(a):
    head(a, "k0_kernel")
    a("""s_cmp_ge_u32 s2, 240
s_cbranch_scc1 k0_end
s_load_dwordx4 s[4:7], s[0:1], 64
s_load_dwordx2 s[8:9], s[0:1], 96
s_and_b32 s3, s2, 7
s_mul_i32 s3, s3, 30
s_lshr_b32 s10, s2, 3
s_add_u32 s3, s3, s10          ; colgrp16
v_and_b32 v1, 127, v0          ; k0
v_lshrrev_b32 v2, 7, v0        ; half
v_lshlrev_b32 v2, 4, v2
s_lshl_b32 s10, s3, 5
v_add_u32 v2, s10, v2
v_mul_u32_u24 v3, 7680, v1
v_add_u32 v2, v2, v3
v_lshlrev_b32 v1, 1, v1
""")
    for i in range(1, 5): a(f"v_add_u32 v{2+i}, {i*128*7680}, v2")
    a("s_waitcnt lgkmcnt(0)")
    for i in range(5): a(f"global_load_ushort v{8+i}, v1, s[4:5] offset:{256*i}")
    for i in range(5): a(f"global_load_dwordx4 v[{16+4*i}:{19+4*i}], v{2+i}, s[6:7]")
    a("s_waitcnt vmcnt(5)")
    for i in range(5):
        a(f"v_lshlrev_b32 v{8+i}, 16, v{8+i}")
        sigmoid(a, 14, 8 + i)
        a(f"v_mul_f32 v{8+i}, v{8+i}, v14")
        rnd_bf16(a, 8 + i)
    for i in range(5):
        a(f"s_waitcnt vmcnt({4-i})")
        gemv_acc(a, 40, 16 + 4 * i, 8 + i, i == 0, 14)
    reduce8(a, 40)
    a("""v_lshrrev_b32 v1, 4, v0
v_lshlrev_b32 v1, 3, v1        ; (wave*4+g)*8
ds_write_b64 v1, v[40:41]
s_waitcnt lgkmcnt(0)
s_barrier
v_cmp_gt_u32 vcc, 16, v0
s_and_saveexec_b64 s[12:13], vcc
s_cbranch_execz k0_end
v_lshrrev_b32 v1, 3, v0
v_lshlrev_b32 v1, 6, v1
v_and_b32 v2, 7, v0
v_lshl_add_u32 v1, v2, 2, v1
ds_read2_b32 v[4:5], v1 offset0:0 offset1:8
s_mul_i32 s10, s3, 1639
s_lshr_b32 s10, s10, 16
s_mov_b32 s11, 0
s_cmp_eq_u32 s10, 1
s_cselect_b32 s11, 1.0, s11
s_cmp_eq_u32 s10, 4
s_cselect_b32 s11, 1.0, s11
s_cmp_eq_u32 s10, 2""")
    a(f"s_cselect_b32 s14, {fl(1.0/(2048*640))}, 1.0")
    a("""s_lshl_b32 s10, s3, 6
v_lshl_add_u32 v1, v0, 2, s10
s_waitcnt lgkmcnt(0)
v_add_f32 v4, v4, v5""")
    rnd_bf16(a, 4)
    a("v_add_f32 v4, s11, v4")
    rnd_bf16(a, 4)
    a("""v_mul_f32 v4, s14, v4
global_store_dword v1, v4, s[8:9]
k0_end:
s_endpgm""")
    return desc("k0_kernel", 48)

def sincos(a, c, s, th):
    a(f"v_cos_f32 v{c}, v{th}")
    a(f"v_sin_f32 v{s}, v{th}")

def mfma(a, d, x, y, c):
    cs = "0" if c is None else f"v[{c}:{c+3}]"
    a(f"v_mfma_f32_16x16x32_bf16 v[{d}:{d+3}], v[{x}:{x+3}], v[{y}:{y+3}], {cs}")

def wave_sum(a, regs, sdst):
    for r in (8, 4, 2, 1):
        for x in regs: a(f"v_add_f32_dpp v{x}, v{x}, v{x} row_ror:{r} row_mask:0xf bank_mask:0xf")
    for x in regs: a(f"v_add_f32_dpp v{x}, v{x}, v{x} row_bcast:15 row_mask:0xa bank_mask:0xf")
    for x in regs: a(f"v_add_f32_dpp v{x}, v{x}, v{x} row_bcast:31 row_mask:0xc bank_mask:0xf")
    for x, s in zip(regs, sdst): a(f"v_readlane_b32 s{s}, v{x}, 63")

def pk(a, op, d, x, y, z=None, mods=""):
    def f(o): return o if isinstance(o, str) else f"v[{o}:{o+1}]"
    if z is None: a(f"v_pk_{op}_f32 {f(d)}, {f(x)}, {f(y)} {mods}")
    else: a(f"v_pk_{op}_f32 {f(d)}, {f(x)}, {f(y)}, {f(z)} {mods}")

def cmul_tw(a, tr, ti, c, s, t):
    for h in (0, 2):
        pk(a, "mul", t + h, ti + h, s + h)
        pk(a, "mul", ti + h, ti + h, c + h)
    for h in (0, 2):
        pk(a, "fma", ti + h, tr + h, s + h, ti + h, "neg_lo:[1,0,0] neg_hi:[1,0,0]")
        pk(a, "fma", tr + h, tr + h, c + h, t + h)

def k1(a):
    head(a, "k1_kernel")
    X = 8
    SA = 14
    CA = 24
    H = 34
    CM, SM, NSM = 44, 48, 52
    TWC, TWS = 56, 64
    FB = 72
    T = 96
    a("""s_cmp_ge_u32 s2, 256
s_cbranch_scc1 k1_end
s_load_dwordx2 s[4:5], s[0:1], 0
s_load_dwordx2 s[8:9], s[0:1], 96
v_lshrrev_b32 v1, 6, v0
v_and_b32 v0, 63, v0
v_readfirstlane_b32 s3, v1     ; wave
v_lshlrev_b32 v1, 2, v0
v_lshlrev_b32 v2, 3, v0
s_lshl_b32 s10, s3, 8
s_add_u32 s10, s10, s2
s_mul_i32 s10, s10, 1280
s_waitcnt lgkmcnt(0)""")
    addbase(a, 4, 4, "s10")
    addbase(a, 6, 8, 2560)
    for t in range(5): a(f"global_load_dword v{X+t}, v1, s[4:5] offset:{256*t}")
    for t in range(5): a(f"global_load_dwordx2 v[{CA+2*t}:{CA+2*t+1}], v2, s[6:7] offset:{512*t}")
    for t in range(5): a(f"global_load_dwordx2 v[{SA+2*t}:{SA+2*t+1}], v2, s[8:9] offset:{512*t}")
    a(f"""s_lshr_b32 s11, s3, 1          ; k5
s_and_b32 s12, s3, 1           ; kh
v_and_b32 v3, 15, v0           ; c16
v_lshrrev_b32 v4, 4, v0        ; g
v_lshrrev_b32 v5, 2, v3
s_lshl_b32 s13, s12, 2
v_add_u32 v5, s13, v5          ; k1
v_and_b32 v6, 3, v3
v_mad_u32_u24 v6, v6, 5, s11   ; kappa
v_cvt_f32_u32 v6, v6
v_lshlrev_b32 v7, 9, v4
v_add_u32 v7, s2, v7           ; 512 g + s2
v_mul_u32_u24 v{T}, v5, v7
v_lshl_add_u32 v{T+1}, v5, 8, v{T}
v_and_b32 v{T}, 2047, v{T}
v_and_b32 v{T+1}, 2047, v{T+1}
v_cvt_f32_u32 v{T}, v{T}
v_cvt_f32_u32 v{T+1}, v{T+1}
v_mul_f32 v{T}, {fl(1/2048)}, v{T}
v_mul_f32 v{T+1}, {fl(1/2048)}, v{T+1}
v_mul_f32 v{T+2}, {fl(1/20)}, v6""")
    for h in range(2):
        for p in range(2):
            for u in range(2):
                d1 = 2 * p + u
                if d1 == 0: th = T + h
                else:
                    th = T + 3
                    a(f"v_fmamk_f32 v{th}, v{T+2}, {fl(d1)}, v{T+h}")
                sincos(a, T + 4 + u, T + 6 + u, th)
            a(f"v_cvt_pk_bf16_f32 v{CM+2*h+p}, v{T+4}, v{T+5}")
            a(f"v_cvt_pk_bf16_f32 v{SM+2*h+p}, v{T+6}, v{T+7}")
            a(f"v_cvt_pk_bf16_f32 v{NSM+2*h+p}, -v{T+6}, -v{T+7}")
    a(f"""v_mul_f32 v{T}, {fl(1/640)}, v6
v_lshlrev_b32 v{T+1}, 2, v4
v_cvt_f32_u32 v{T+1}, v{T+1}            ; 4g
v_mul_f32 v{T+2}, v{T+1}, v{T}""")
    for et in range(2):
        for rr in range(4):
            o = 16 * et + rr
            if o == 0: th = T + 2
            else:
                th = T + 3
                a(f"v_fmamk_f32 v{th}, v{T}, {fl(o)}, v{T+2}")
            sincos(a, TWC + 4 * et + rr, TWS + 4 * et + rr, th)
    a(f"""v_cvt_f32_u32 v{T}, v3
v_mul_f32 v{T}, {fl(1/32)}, v{T}
v_mul_f32 v{T+2}, v{T+1}, v{T}""")
    for p in range(2):
        for u in range(2):
            rr = 2 * p + u
            if rr == 0: th = T + 2
            else:
                th = T + 3
                a(f"v_fmamk_f32 v{th}, v{T}, {fl(rr)}, v{T+2}")
            sincos(a, T + 4 + u, T + 6 + u, th)
        a(f"v_cvt_pk_bf16_f32 v{FB+p}, -v{T+6}, -v{T+7}")
        a(f"v_cvt_pk_bf16_f32 v{FB+2+p}, v{T+4}, v{T+5}")
        a(f"v_cvt_pk_bf16_f32 v{FB+4+p}, v{T+6}, v{T+7}")
    a(f"""v_and_b32 v{T}, 1, v0
v_mul_u32_u24 v{T}, 0x8000, v{T}
v_lshl_or_b32 v{T}, v{T}, 16, v{T}""")
    for j in range(6):
        a(f"v_xor_b32 v{FB+12+j}, v{T}, v{FB+j}")
    for j in range(6):
        a(f"v_xor_b32 v{FB+6+j}, 0x80000000, v{FB+j}")
        a(f"v_xor_b32 v{FB+18+j}, 0x80000000, v{FB+12+j}")
    a(f"""s_mul_i32 s13, s3, 272
v_add_u32 v1, s13, v1
v_mul_u32_u24 v2, 544, v4
v_lshrrev_b32 v{T}, 2, v3
v_lshl_add_u32 v2, v{T}, 6, v2
v_and_b32 v{T}, 3, v3
v_lshl_add_u32 v2, v{T}, 3, v2
s_lshl_b32 s13, s11, 1
s_max_u32 s13, s13, 1
s_sub_u32 s13, s13, 1
s_mul_i32 s13, s13, {8*272}
v_add_u32 v2, s13, v2
s_lshl_b32 s13, s3, 11
s_mul_i32 s14, s2, 12288
s_add_u32 s13, s13, s14
s_add_u32 s13, s13, {WS_Z1}
v_lshlrev_b32 v5, 9, v4
v_lshl_add_u32 v5, v3, 4, v5
s_mov_b32 s16, {fl(C1)}
s_mov_b32 s18, {fl(C2)}
s_mov_b32 s20, {fl(-S1)}
s_mov_b32 s22, {fl(-S2)}""")
    addbase(a, 14, 8, "s13")
    a("s_waitcnt vmcnt(10)")
    for t in range(5):
        a(f"v_lshlrev_b32 v{H+2*t}, 16, v{X+t}")
        a(f"v_and_b32 v{H+2*t+1}, 0xffff0000, v{X+t}")
    pk(a, "add", T, H, H + 2)
    pk(a, "mul", T + 2, H, H)
    for t in range(1, 5):
        if t >= 2: pk(a, "add", T, T, H + 2 * t)
        pk(a, "fma", T + 2, H + 2 * t, H + 2 * t, T + 2)
    a(f"v_add_f32 v{T}, v{T}, v{T+1}")
    a(f"v_add_f32 v{T+2}, v{T+2}, v{T+3}")
    wave_sum(a, [T, T + 2], [24, 25])
    a(f"""v_mov_b32 v{T}, {fl(1/640)}
v_mul_f32 v{T+1}, s24, v{T}           ; mean
v_mul_f32 v{T+2}, s25, v{T}
v_fma_f32 v{T+2}, -v{T+1}, v{T+1}, v{T+2}
v_max_f32 v{T+2}, 0, v{T+2}
v_add_f32 v{T+2}, {fl(1e-5)}, v{T+2}
v_rsq_f32 v{T+2}, v{T+2}
v_mul_f32 v{T+4}, -v{T+1}, v{T+2}""".replace("v_mul_f32 v%d, -v" % (T + 4), "v_mul_f32_e64 v%d, -v" % (T + 4)))
    for t in range(5): pk(a, "fma", H + 2 * t, H + 2 * t, T + 2, T + 4, "op_sel_hi:[1,0,0]")
    a("s_waitcnt vmcnt(0)")
    for t in range(5): pk(a, "fma", H + 2 * t, H + 2 * t, CA + 2 * t, SA + 2 * t)
    bs = "op_sel_hi:[1,0,1]"
    pk(a, "add", T, H + 2, H + 8)
    pk(a, "add", T + 2, H + 4, H + 6)
    pk(a, "add", T + 4, H + 2, H + 8, None, "neg_lo:[0,1] neg_hi:[0,1]")
    pk(a, "add", T + 6, H + 4, H + 6, None, "neg_lo:[0,1] neg_hi:[0,1]")
    pk(a, "fma", H + 2, T, "s[16:17]", H, bs)
    pk(a, "fma", H + 6, T, "s[18:19]", H, bs)
    pk(a, "add", H, H, T)
    pk(a, "mul", H + 4, T + 4, "s[20:21]", None, "op_sel_hi:[1,0]")
    pk(a, "mul", H + 8, T + 4, "s[22:23]", None, "op_sel_hi:[1,0]")
    pk(a, "fma", H + 2, T + 2, "s[18:19]", H + 2, bs)
    pk(a, "fma", H + 6, T + 2, "s[16:17]", H + 6, bs)
    pk(a, "add", H, H, T + 2)
    pk(a, "fma", H + 4, T + 6, "s[22:23]", H + 4, bs)
    pk(a, "fma", H + 8, T + 6, "s[20:21]", H + 8, bs + " neg_lo:[1,0,0] neg_hi:[1,0,0]")
    for p in range(5):
        a(f"v_cvt_pk_bf16_f32 v{X+p}, v{H+2*p}, v{H+2*p+1}")
        a(f"ds_write_b32 v1, v{X+p} offset:{p*8*272}")
    a("""s_waitcnt lgkmcnt(0)
s_barrier
s_cmp_ge_u32 s3, 6
s_cbranch_scc1 k1_end""")
    UR, UI = 8, 16
    TR, TI = 24, 32
    for et in range(2):
        for h in range(2):
            a(f"ds_read_b64_tr_b16 v[{UR+4*et+2*h}:{UR+4*et+2*h+1}], v2 offset:{h*272+et*32}")
    a("s_cmp_eq_u32 s11, 0")
    a("s_cbranch_scc1 k1_real")
    for et in range(2):
        for h in range(2):
            a(f"ds_read_b64_tr_b16 v[{UI+4*et+2*h}:{UI+4*et+2*h+1}], v2 offset:{8*272+h*272+et*32}")
    a("s_waitcnt lgkmcnt(4)")
    for et in range(2):
        mfma(a, TR + 4 * et, UR + 4 * et, CM, None)
        mfma(a, TI + 4 * et, UR + 4 * et, NSM, None)
    a("s_waitcnt lgkmcnt(0)")
    for et in range(2):
        mfma(a, TR + 4 * et, UI + 4 * et, SM, TR + 4 * et)
        mfma(a, TI + 4 * et, UI + 4 * et, CM, TI + 4 * et)
    a("s_branch k1_tw")
    a("k1_real:")
    a("s_waitcnt lgkmcnt(0)")
    for et in range(2):
        mfma(a, TR + 4 * et, UR + 4 * et, CM, None)
        mfma(a, TI + 4 * et, UR + 4 * et, NSM, None)
    a("k1_tw:")
    AB = 8
    for et in range(2):
        cmul_tw(a, TR + 4 * et, TI + 4 * et, TWC + 4 * et, TWS + 4 * et, T)
        for p in range(2):
            a(f"v_cvt_pk_bf16_f32 v{AB+4*et+p}, v{TR+4*et+2*p}, v{TR+4*et+2*p+1}")
            a(f"v_cvt_pk_bf16_f32 v{AB+4*et+2+p}, v{TI+4*et+2*p}, v{TI+4*et+2*p+1}")
    XR, XI = T, T + 8
    for et in range(2):
        for q in range(2):
            fb = FB + (et * 2 + q) * 6
            mfma(a, XR + 4 * q, AB + 4 * et, fb + 2, None if et == 0 else XR + 4 * q)
            mfma(a, XI + 4 * q, AB + 4 * et, fb, None if et == 0 else XI + 4 * q)
    for q in range(2):
        for rr in range(4):
            a(f"v_cvt_pk_bf16_f32 v{16+4*q+rr}, v{XR+4*q+rr}, v{XI+4*q+rr}")
        a(f"global_store_dwordx4 v5, v[{16+4*q}:{19+4*q}], s[14:15] offset:{256*q}")
    a("""k1_end:
s_endpgm""")
    return desc("k1_kernel", 112)

def k2(a):
    head(a, "k2_kernel")
    Z = 8
    WR, WI = 16, 24
    MA = 32
    F = 48
    T = 56
    AD = 80
    IS = 80; KS = 16 * IS; BUF = 16 * KS
    a(f"""s_cmp_ge_u32 s2, 192
s_cbranch_scc1 k2_end
s_load_dwordx4 s[4:7], s[0:1], 8
s_load_dwordx2 s[8:9], s[0:1], 96
v_lshrrev_b32 v1, 6, v0
v_and_b32 v0, 63, v0
v_readfirstlane_b32 s3, v1     ; wave
v_and_b32 v3, 15, v0           ; i
v_lshrrev_b32 v4, 4, v0        ; g
s_and_b32 s10, s2, 7           ; x
s_lshr_b32 s11, s2, 6          ; k5
s_bfe_u32 s12, s2, 0x30003     ; jg
s_sub_u32 s13, 0, s10
s_and_b32 s13, s13, 7
s_cmp_lt_u32 s12, 4
s_cselect_b32 s13, s10, s13    ; k1
s_cselect_b32 s20, 1, -1       ; sigma
s_cselect_b32 s21, 0, 0x80000000
s_cselect_b32 s22, 0, 640
s_lshl_b32 s14, s11, 3
s_add_u32 s14, s14, s13
s_lshl_b32 s14, s14, 3
s_add_u32 s14, s14, s12        ; G
s_lshl_b32 s15, s14, 6
s_mul_i32 s16, s3, {2*12288}
s_add_u32 s15, s15, s16
s_add_u32 s15, s15, {WS_Z1}
v_mul_u32_u24 v1, {64*12288}, v4
v_lshl_add_u32 v1, v3, 2, v1""")
    for tl in range(2):
        for r in range(4):
            if tl + r: a(f"v_add_u32 v{AD+4*tl+r}, {tl*12288+r*16*12288}, v1")
    a("s_waitcnt lgkmcnt(0)")
    addbase(a, 16, 8, "s15")
    for tl in range(2):
        for r in range(4):
            ad = AD + 4 * tl + r if tl + r else 1
            a(f"global_load_dword v{Z+4*tl+r}, v{ad}, s[16:17]")
    a(f"""s_lshl_b32 s15, s12, 4
v_add_u32 v5, s15, v3
v_mad_u32_u24 v5, v5, 5, s11   ; kd
v_mul_i32_i24 v5, s20, v5
v_add_u32 v5, s22, v5          ; col
v_lshlrev_b32 v5, 1, v5
s_lshl_b32 s15, s3, 4
s_add_u32 s15, s15, s13
v_lshl_add_u32 v6, v4, 9, s15
s_movk_i32 s23, 642""")
    for tl in range(2):
        for r in range(4):
            ad = AD + 4 * tl + r
            a(f"v_add_u32 v{ad}, {8*tl+128*r}, v6")
            a(f"v_mul_i32_i24 v{ad}, s20, v{ad}")
            a(f"v_and_b32 v{ad}, 2047, v{ad}")
            a(f"v_mad_u32_u24 v{ad}, v{ad}, s23, v5")
            a(f"global_load_ushort v{WR+4*tl+r}, v{ad}, s[4:5]")
            a(f"global_load_ushort v{WI+4*tl+r}, v{ad}, s[6:7]")
    a(f"""v_cvt_f32_u32 v{T}, v3
v_mul_f32 v{T}, {fl(1/256)}, v{T}       ; m/256
v_lshlrev_b32 v{T+1}, 6, v4
s_lshl_b32 s15, s3, 1
v_add_u32 v{T+2}, s15, v{T+1}
v_cvt_f32_u32 v{T+1}, v{T+1}
v_cvt_f32_u32 v{T+2}, v{T+2}
v_mul_f32 v{T+1}, v{T+1}, v{T}
v_mul_f32 v{T+2}, v{T+2}, v{T}""")
    for (dst, bs, off) in ((MA, T + 2, 0), (MA + 8, T + 2, 1), (F, T + 1, 0)):
        for r in range(4):
            o = 16 * r + off
            if o == 0: th = bs
            else:
                th = T + 3
                a(f"v_fmamk_f32 v{th}, v{T}, {fl(o)}, v{bs}")
            sincos(a, T + 4, T + 5, th)
            a(f"v_cvt_pk_bf16_f32 v{dst+r}, v{T+4}, v{T+5}")
            a(f"v_cvt_pk_bf16_f32 v{dst+4+r}, -v{T+5}, v{T+4}")
    a(f"""v_mul_u32_u24 v1, {IS}, v3
v_mad_u32_u24 v2, v4, 16, v1
s_mul_i32 s15, s3, {2*KS}
v_add_u32 v2, s15, v2
s_movk_i32 s15, {4*KS}
v_mad_u32_u24 v1, v4, s15, v1
s_lshl_b32 s15, s3, 3
v_add_u32 v1, s15, v1
v_and_b32 v5, 3, v3
v_lshlrev_b32 v5, 4, v5
v_and_b32 v6, 12, v3
v_add_u32 v5, v5, v6
v_lshl_add_u32 v5, v4, 6, v5
s_lshl_b32 s15, s14, 14
s_lshl_b32 s16, s3, 11
s_add_u32 s15, s15, s16
s_add_u32 s15, s15, {WS_Z2}""")
    addbase(a, 18, 8, "s15")
    DR, DI = T, T + 8
    P = T + 16
    def stage(mats):
        for tl in range(2):
            mfma(a, DR + 4 * tl, mats[tl], Z + 4 * tl, None)
            mfma(a, DI + 4 * tl, mats[tl] + 4, Z + 4 * tl, None)
    def exchange(buf):
        for r in range(4):
            for tl in range(2):
                a(f"v_cvt_pk_bf16_f32 v{P+2*r+tl}, v{DR+4*tl+r}, v{DI+4*tl+r}")
            a(f"ds_write_b64 v1, v[{P+2*r}:{P+2*r+1}] offset:{buf+r*KS}")
        a("s_waitcnt lgkmcnt(0)")
        a("s_barrier")
        for tl in range(2):
            a(f"ds_read_b128 v[{Z+4*tl}:{Z+4*tl+3}], v2 offset:{buf+tl*KS}")
    a("s_waitcnt vmcnt(16)")
    stage([MA, MA + 8])
    exchange(0)
    a("s_waitcnt vmcnt(0)")
    for j in range(8):
        a(f"v_lshlrev_b32 v{WR+j}, 16, v{WR+j}")
        a(f"v_lshlrev_b32 v{WI+j}, 16, v{WI+j}")
        a(f"v_xor_b32 v{WI+j}, s21, v{WI+j}")
    a("s_waitcnt lgkmcnt(0)")
    stage([F, F])
    for tl in range(2):
        for h in (0, 2):
            o = 4 * tl + h
            pk(a, "mul", P + h, DI + o, WI + o)
            pk(a, "mul", DI + o, DI + o, WR + o)
        for h in (0, 2):
            o = 4 * tl + h
            pk(a, "fma", DI + o, DR + o, WI + o, DI + o)
            pk(a, "fma", DR + o, DR + o, WR + o, P + h, "neg_lo:[0,0,1] neg_hi:[0,0,1]")
        for r in range(4):
            a(f"v_cvt_pk_bf16_f32 v{Z+4*tl+r}, v{DR+4*tl+r}, -v{DI+4*tl+r}")
    stage([MA, MA + 8])
    exchange(BUF)
    a("s_waitcnt lgkmcnt(0)")
    stage([F, F])
    for tl in range(2):
        for r in range(4):
            a(f"v_cvt_pk_bf16_f32 v{P+4*tl+r}, v{DR+4*tl+r}, v{DI+4*tl+r}")
            a(f"global_store_dword v5, v{P+4*tl+r}, s[18:19] offset:{1024*tl+256*r}")
    a("""k2_end:
s_endpgm""")
    return desc("k2_kernel", 88)

def k3(a):
    head(a, "k3_kernel")
    Y = 8
    X = 24
    GA, SB, CB, GB = 30, 40, 50, 60
    WRR = 70
    V = 76
    FB = 86
    TWC, TWS = 102, 106
    CM = 110
    T = 134
    RS = 576
    a(f"""s_cmp_ge_u32 s2, 256
s_cbranch_scc1 k3_end
s_load_dwordx2 s[4:5], s[0:1], 0
s_load_dwordx2 s[6:7], s[0:1], 32
s_load_dwordx2 s[8:9], s[0:1], 96
s_load_dwordx2 s[26:27], s[0:1], 80
v_lshrrev_b32 v1, 6, v0
v_and_b32 v0, 63, v0
v_readfirstlane_b32 s3, v1     ; wave
v_and_b32 v3, 15, v0           ; c16
v_lshrrev_b32 v4, 4, v0        ; g
s_lshr_b32 s11, s3, 1          ; k5
s_and_b32 s12, s3, 1           ; et
s_and_b32 s13, s2, 15
s_lshl_b32 s13, s13, 2
s_bfe_u32 s14, s2, 0x20004
s_add_u32 s13, s13, s14
s_lshl_b32 s13, s13, 2
s_lshr_b32 s14, s2, 6
s_add_u32 s13, s13, s14        ; pos
s_lshl_b32 s13, s13, 6
s_lshl_b32 s14, s11, 20
s_add_u32 s13, s13, s14
s_add_u32 s13, s13, {WS_Z2}
v_lshrrev_b32 v5, 2, v3
v_lshl_add_u32 v6, v5, 3, v4
v_lshlrev_b32 v6, 14, v6
v_and_b32 v7, 3, v3
v_lshl_add_u32 v6, v7, 4, v6
v_add_u32 v{T}, {4<<14}, v6
v_add_u32 v{T+1}, {32<<14}, v6
v_add_u32 v{T+2}, {36<<14}, v6
v_lshlrev_b32 v1, 2, v0
v_lshlrev_b32 v2, 3, v0
s_lshl_b32 s10, s3, 8
s_add_u32 s10, s10, s2         ; row
s_mul_i32 s28, s10, 1280
s_waitcnt lgkmcnt(0)""")
    addbase(a, 14, 8, "s13")
    a("s_cmp_ge_u32 s3, 6")
    a("s_cbranch_scc1 k3_noload")
    a(f"""global_load_dwordx4 v[{Y}:{Y+3}], v6, s[14:15]
global_load_dwordx4 v[{Y+4}:{Y+7}], v{T}, s[14:15]
global_load_dwordx4 v[{Y+8}:{Y+11}], v{T+1}, s[14:15]
global_load_dwordx4 v[{Y+12}:{Y+15}], v{T+2}, s[14:15]
k3_noload:""")
    addbase(a, 4, 4, "s28")
    addbase(a, 26, 26, "s28")
    for t in range(5): a(f"global_load_dword v{WRR+t}, v1, s[6:7] offset:{256*t}")
    for nm, sec in ((CB, 4), (SB, 3), (GA, 2), (GB, 5)):
        addbase(a, 16, 8, 2560 * sec)
        for t in range(5): a(f"global_load_dwordx2 v[{nm+2*t}:{nm+2*t+1}], v2, s[16:17] offset:{512*t}")
    for t in range(5): a(f"global_load_dword v{X+t}, v1, s[4:5] offset:{256*t}")
    a(f"""s_lshl_b32 s13, s12, 4
v_add_u32 v6, s13, v3
v_cvt_f32_u32 v6, v6                    ; e
v_mul_f32 v{T}, {fl(1/32)}, v6
v_lshlrev_b32 v{T+1}, 2, v4
v_cvt_f32_u32 v{T+1}, v{T+1}
v_mul_f32 v{T+2}, v{T+1}, v{T}
v_and_b32 v{T+8}, 1, v0
v_mul_u32_u24 v{T+8}, 0x8000, v{T+8}
v_lshl_or_b32 v{T+8}, v{T+8}, 16, v{T+8}""")
    for r in range(4):
        if r == 0: th = T + 2
        else:
            th = T + 3
            a(f"v_fmamk_f32 v{th}, v{T}, {fl(r)}, v{T+2}")
        sincos(a, T + 4, T + 5, th)
        a(f"v_cvt_pk_bf16_f32 v{FB+r}, v{T+4}, v{T+5}")
        a(f"v_cvt_pk_bf16_f32 v{FB+4+r}, -v{T+5}, v{T+4}")
    for j in range(8): a(f"v_xor_b32 v{FB+8+j}, v{T+8}, v{FB+j}")
    a(f"""v_cvt_f32_u32 v{T+9}, s11               ; k5
v_mul_f32 v{T}, {fl(1/640)}, v6
v_mul_f32 v{T+2}, v{T+9}, v{T}""")
    for r in range(4):
        if r == 0: th = T + 2
        else:
            th = T + 3
            a(f"v_fmamk_f32 v{th}, v{T}, {fl(5*r)}, v{T+2}")
        sincos(a, TWC + r, TWS + r, th)
    a(f"""v_lshl_add_u32 v{T+2}, v5, 8, s2        ; 256 s1 + s2 (nu=0)
v_mul_u32_u24 v{T}, v4, v{T+2}
v_lshl_add_u32 v{T+1}, v{T+2}, 2, v{T}
v_and_b32 v{T}, 2047, v{T}
v_and_b32 v{T+1}, 2047, v{T+1}
v_cvt_f32_u32 v{T}, v{T}
v_cvt_f32_u32 v{T+1}, v{T+1}
v_cvt_f32_u32 v{T+2}, v7
v_mul_f32 v{T+2}, {fl(1/20)}, v{T+2}    ; d1/20
v_mul_f32 v{T+3}, v{T+2}, v{T+9}        ; d1*k5/20
v_fmamk_f32 v{T}, v{T}, {fl(1/2048)}, v{T+3}
v_fmamk_f32 v{T+1}, v{T+1}, {fl(1/2048)}, v{T+3}
v_and_b32 v{T+8}, 1, v4
v_mul_u32_u24 v{T+8}, 0x8000, v{T+8}
v_lshl_or_b32 v{T+8}, v{T+8}, 16, v{T+8}""")
    for kh in range(2):
        for p in range(2):
            for u in range(2):
                j1 = 2 * p + u
                if j1 == 0: th = T + kh
                else:
                    th = T + 3
                    a(f"v_fmamk_f32 v{th}, v{T+2}, {fl(5*j1)}, v{T+kh}")
                sincos(a, T + 4 + u, T + 6 + u, th)
            a(f"v_cvt_pk_bf16_f32 v{CM+2*kh+p}, v{T+4}, v{T+5}")
            a(f"v_cvt_pk_bf16_f32 v{CM+4+2*kh+p}, v{T+6}, v{T+7}")
            a(f"v_cvt_pk_bf16_f32 v{CM+8+2*kh+p}, -v{T+6}, -v{T+7}")
    for j in range(12): a(f"v_xor_b32 v{CM+12+j}, v{T+8}, v{CM+j}")
    a(f"""v_mul_u32_u24 v6, {RS}, v5
v_mul_u32_u24 v7, 144, v7
v_add_u32 v6, v6, v7
v_lshl_add_u32 v6, v4, 4, v6
s_lshl_b32 s13, s11, 1
s_max_u32 s13, s13, 1
s_sub_u32 s13, s13, 1
s_mul_i32 s13, s13, {8*RS}
s_lshl_b32 s14, s12, 6
s_add_u32 s13, s13, s14
v_add_u32 v6, s13, v6
v_mul_u32_u24 v7, 144, v4
v_lshl_add_u32 v7, v3, 3, v7
s_mul_i32 s13, s3, {RS}
v_add_u32 v7, s13, v7
s_mov_b32 s16, {fl(2*C1)}
s_mov_b32 s18, {fl(2*C2)}
s_mov_b32 s20, {fl(2*S1)}
s_mov_b32 s22, {fl(2*S2)}
s_cmp_ge_u32 s3, 6
s_cbranch_scc1 k3_skipb
s_waitcnt vmcnt(30)""")
    TR, TI = T, T + 8
    for q in range(2):
        for kh in range(2):
            y = Y + (kh * 2 + q) * 4
            mfma(a, TR + 4 * kh, y, FB + 8 * q, None if q == 0 else TR + 4 * kh)
            mfma(a, TI + 4 * kh, y, FB + 8 * q + 4, None if q == 0 else TI + 4 * kh)
    AR, AI = Y, Y + 4
    for kh in range(2):
        cmul_tw(a, TR + 4 * kh, TI + 4 * kh, TWC, TWS, T + 16)
        for p in range(2):
            a(f"v_cvt_pk_bf16_f32 v{AR+2*kh+p}, v{TR+4*kh+2*p}, v{TR+4*kh+2*p+1}")
            a(f"v_cvt_pk_bf16_f32 v{AI+2*kh+p}, v{TI+4*kh+2*p}, v{TI+4*kh+2*p+1}")
    VR, VI = T + 16, T + 24
    for nu in range(2): mfma(a, VR + 4 * nu, AR, CM + 12 * nu, None)
    for nu in range(2): mfma(a, VR + 4 * nu, AI, CM + 12 * nu + 4, VR + 4 * nu)
    a("s_cmp_eq_u32 s11, 0")
    a("s_cbranch_scc1 k3_real")
    for nu in range(2): mfma(a, VI + 4 * nu, AI, CM + 12 * nu, None)
    for nu in range(2): mfma(a, VI + 4 * nu, AR, CM + 12 * nu + 8, VI + 4 * nu)
    for nu in range(2): a(f"ds_write_b128 v6, v[{VI+4*nu}:{VI+4*nu+3}] offset:{8*RS+4*nu*RS}")
    a("k3_real:")
    for nu in range(2): a(f"ds_write_b128 v6, v[{VR+4*nu}:{VR+4*nu+3}] offset:{4*nu*RS}")
    a("k3_skipb:")
    a("s_waitcnt vmcnt(15)")
    for t in range(5):
        a(f"v_lshlrev_b32 v{V+2*t}, 16, v{WRR+t}")
        a(f"v_and_b32 v{V+2*t+1}, 0xffff0000, v{WRR+t}")
    pk(a, "mul", T + 2, SB, V)
    for t in range(1, 5): pk(a, "fma", T + 2, SB + 2 * t, V + 2 * t, T + 2)
    for t in range(5): pk(a, "mul", V + 2 * t, V + 2 * t, CB + 2 * t)
    pk(a, "add", T, V, V + 2)
    for t in range(2, 5): pk(a, "add", T, T, V + 2 * t)
    a(f"v_add_f32 v{T}, v{T}, v{T+1}")
    a(f"v_add_f32 v{T+2}, v{T+2}, v{T+3}")
    wave_sum(a, [T, T + 2], [30, 31])
    a("""s_waitcnt lgkmcnt(0)
s_barrier""")
    U = 8
    for p in range(5): a(f"ds_read_b64 v[{U+2*p}:{U+2*p+1}], v7 offset:{p*8*RS}")
    X1 = FB
    a("s_waitcnt vmcnt(0)")
    for t in range(5):
        a(f"v_lshlrev_b32 v{X1+2*t}, 16, v{X+t}")
        a(f"v_and_b32 v{X1+2*t+1}, 0xffff0000, v{X+t}")
    a("s_waitcnt lgkmcnt(0)")
    bs = "op_sel_hi:[1,0,1]"
    pk(a, "add", T, U + 2, U + 6)
    pk(a, "fma", T + 2, U + 2, "s[16:17]", U, bs)
    pk(a, "fma", T + 4, U + 2, "s[18:19]", U, bs)
    pk(a, "mul", T + 6, U + 4, "s[20:21]", None, "op_sel_hi:[1,0]")
    pk(a, "mul", T + 8, U + 4, "s[22:23]", None, "op_sel_hi:[1,0]")
    pk(a, "fma", T, T, "2.0", U, bs)
    pk(a, "fma", T + 2, U + 6, "s[18:19]", T + 2, bs)
    pk(a, "fma", T + 4, U + 6, "s[16:17]", T + 4, bs)
    pk(a, "fma", T + 6, U + 8, "s[22:23]", T + 6, bs)
    pk(a, "fma", T + 8, U + 8, "s[20:21]", T + 8, bs + " neg_lo:[1,0,0] neg_hi:[1,0,0]")
    ng = "neg_lo:[0,1] neg_hi:[0,1]"
    pk(a, "add", T + 10, T + 2, T + 6)
    pk(a, "add", T + 12, T + 4, T + 8)
    pk(a, "add", T + 14, T + 4, T + 8, None, ng)
    pk(a, "add", T + 16, T + 2, T + 6, None, ng)
    ys = [T, T + 10, T + 12, T + 14, T + 16]
    for t in range(5): pk(a, "fma", X1 + 2 * t, ys[t], GA + 2 * t, X1 + 2 * t)
    pk(a, "add", T, X1, X1 + 2)
    pk(a, "mul", T + 2, X1, X1)
    pk(a, "mul", T + 4, X1, V)
    for t in range(1, 5):
        if t >= 2: pk(a, "add", T, T, X1 + 2 * t)
        pk(a, "fma", T + 2, X1 + 2 * t, X1 + 2 * t, T + 2)
        pk(a, "fma", T + 4, X1 + 2 * t, V + 2 * t, T + 4)
    for j in (0, 2, 4): a(f"v_add_f32 v{T+j}, v{T+j}, v{T+j+1}")
    wave_sum(a, [T, T + 2, T + 4], [32, 33, 34])
    a(f"""v_mov_b32 v{T}, {fl(1/640)}
v_mul_f32 v{T+1}, s32, v{T}           ; mean
v_mul_f32 v{T+2}, s33, v{T}
v_fma_f32 v{T+2}, -v{T+1}, v{T+1}, v{T+2}
v_max_f32 v{T+2}, 0, v{T+2}
v_add_f32 v{T+2}, {fl(1e-5)}, v{T+2}
v_rsq_f32 v{T+2}, v{T+2}
v_mov_b32 v{T+6}, s34
v_fma_f32 v{T+6}, -v{T+1}, s30, v{T+6}
v_mul_f32_e64 v{T+4}, -v{T+1}, v{T+2}
v_fma_f32 v{T+6}, v{T+6}, v{T+2}, s31      ; r
s_lshl_b32 s13, s3, 2
v_mov_b32 v{T+7}, s13
ds_write_b32 v{T+7}, v{T+6} offset:{40*RS}""")
    H2 = 8
    for t in range(5): pk(a, "fma", H2 + 2 * t, X1 + 2 * t, T + 2, T + 4, "op_sel_hi:[1,0,0]")
    for t in range(5): pk(a, "fma", H2 + 2 * t, H2 + 2 * t, CB + 2 * t, SB + 2 * t)
    for t in range(5): pk(a, "fma", X1 + 2 * t, H2 + 2 * t, GB + 2 * t, X1 + 2 * t)
    for t in range(5):
        a(f"v_cvt_pk_bf16_f32 v{X+t}, v{X1+2*t}, v{X1+2*t+1}")
        a(f"global_store_dword v1, v{X+t}, s[26:27] offset:{256*t}")
    a(f"""v_and_b32 v{T+7}, 7, v0
v_lshlrev_b32 v{T+7}, 2, v{T+7}
s_waitcnt lgkmcnt(0)
s_barrier
ds_read_b32 v{T+8}, v{T+7} offset:{40*RS}
s_waitcnt lgkmcnt(0)
v_cmp_gt_f32 vcc, v{T+8}, v{T+6}
s_cbranch_vccnz k3_end
v_cmp_ge_f32 vcc, v{T+8}, v{T+6}
s_ff1_i32_b32 s13, vcc_lo
s_cmp_lg_u32 s13, s3
s_cbranch_scc1 k3_end
s_mul_i32 s13, s2, 2560
s_add_u32 s13, s13, {WS_H2C}""")
    addbase(a, 14, 8, "s13")
    addbase(a, 16, 14, WS_OUTC - WS_H2C)
    for t in range(5):
        a(f"global_store_dwordx2 v2, v[{H2+2*t}:{H2+2*t+1}], s[14:15] offset:{512*t}")
        a(f"global_store_dwordx2 v2, v[{X1+2*t}:{X1+2*t+1}], s[16:17] offset:{512*t}")
    a(f"""s_lshl_b32 s13, s2, 2
s_add_u32 s13, s13, {WS_RC}
v_mov_b32 v{T+7}, s13
v_mov_b32 v{T+8}, s10
s_mov_b64 exec, 1
global_store_dword v{T+7}, v{T+6}, s[8:9]
global_store_dword v{T+7}, v{T+8}, s[8:9] offset:{WS_IC-WS_RC}
k3_end:
s_endpgm""")
    return desc("k3_kernel", 168)

def argmax256(a, R, lane4, sws, sout, smax):
    m = R + 4
    a(f"v_max_f32 v{m}, v{R}, v{R+1}")
    a(f"v_max3_f32 v{m}, v{m}, v{R+2}, v{R+3}")
    for r in (8, 4, 2, 1): a(f"v_max_f32_dpp v{m}, v{m}, v{m} row_ror:{r} row_mask:0xf bank_mask:0xf")
    a(f"v_max_f32_dpp v{m}, v{m}, v{m} row_bcast:15 row_mask:0xa bank_mask:0xf")
    a(f"v_max_f32_dpp v{m}, v{m}, v{m} row_bcast:31 row_mask:0xc bank_mask:0xf")
    a(f"v_readlane_b32 s{smax}, v{m}, 63")
    a(f"v_mov_b32 v{m}, 3")
    for j in (2, 1, 0):
        a(f"v_cmp_eq_f32 vcc, s{smax}, v{R+j}")
        a(f"v_cndmask_b32 v{m}, v{m}, {j}, vcc")
    a(f"v_max_f32 v{R}, v{R}, v{R+1}")
    a(f"v_max3_f32 v{R}, v{R}, v{R+2}, v{R+3}")
    a(f"v_cmp_eq_f32 vcc, s{smax}, v{R}")
    a(f"s_ff1_i32_b64 s{sout}, vcc")
    a(f"s_and_b32 s{sout}, s{sout}, 63")
    a(f"v_readlane_b32 s{sws}, v{m}, s{sout}")
    a(f"s_lshl_b32 s{sout}, s{sout}, 2")
    a(f"s_add_u32 s{sout}, s{sout}, s{sws}")

def k4(a):
    head(a, "k4_kernel")
    a(f"""s_cmp_ge_u32 s2, 192
s_cbranch_scc1 k4_end
s_load_dwordx4 s[4:7], s[0:1], 40
s_load_dwordx2 s[8:9], s[0:1], 96
s_and_b32 s3, s2, 7
s_mul_i32 s3, s3, 24
s_lshr_b32 s10, s2, 3
s_add_u32 s3, s3, s10          ; colgrp8
v_lshrrev_b32 v2, 7, v0
v_and_b32 v1, 127, v0          ; k0
v_readfirstlane_b32 s11, v2
s_lshl_b32 s10, s3, 4
v_mul_u32_u24 v2, 3072, v1
v_add_u32 v2, s10, v2
v_lshlrev_b32 v1, 2, v1
v_and_b32 v7, 63, v0
v_lshlrev_b32 v7, 4, v7
v_add_u32 v7, {WS_RC}, v7""")
    for i in range(1, 5): a(f"v_add_u32 v{2+i}, {i*128*3072}, v2")
    a("""s_waitcnt lgkmcnt(0)
s_cmp_eq_u32 s11, 0
s_cselect_b32 s4, s4, s6
s_cselect_b32 s5, s5, s7
global_load_dwordx4 v[8:11], v7, s[8:9]""")
    for i in range(5): a(f"global_load_dwordx4 v[{16+4*i}:{19+4*i}], v{2+i}, s[4:5]")
    a("s_waitcnt vmcnt(5)")
    argmax256(a, 8, None, 12, 13, 14)
    a(f"""s_mul_i32 s13, s13, 2560
s_add_u32 s13, s13, {WS_H2C}""")
    addbase(a, 16, 8, "s13")
    for i in range(5): a(f"global_load_dword v{8+i}, v1, s[16:17] offset:{512*i}")
    for i in range(5):
        a(f"s_waitcnt vmcnt({4-i})")
        rnd_bf16(a, 8 + i)
        gemv_acc(a, 40, 16 + 4 * i, 8 + i, i == 0, 14)
    reduce8(a, 40)
    a(f"""v_lshrrev_b32 v1, 4, v0
v_lshlrev_b32 v1, 3, v1
ds_write_b64 v1, v[40:41]
s_waitcnt lgkmcnt(0)
s_barrier
v_cmp_gt_u32 vcc, 8, v0
s_and_saveexec_b64 s[12:13], vcc
s_cbranch_execz k4_end
v_lshlrev_b32 v1, 2, v0
ds_read2_b32 v[4:5], v1 offset0:0 offset1:8
ds_read2_b32 v[6:7], v1 offset0:16 offset1:24
s_lshl_b32 s10, s3, 5
s_add_u32 s10, s10, {WS_HID}
v_add_u32 v1, s10, v1
s_waitcnt lgkmcnt(0)
v_add_f32 v4, v4, v5
v_add_f32 v6, v6, v7""")
    sigmoid(a, 5, 4)
    a("""v_mul_f32 v4, v4, v6
v_mul_f32 v4, v4, v5
global_store_dword v1, v4, s[8:9]
k4_end:
s_endpgm""")
    return desc("k4_kernel", 48)

def k5(a):
    head(a, "k5_kernel")
    a(f"""s_cmp_ge_u32 s2, 80
s_cbranch_scc1 k5_end
s_load_dwordx2 s[4:5], s[0:1], 56
s_load_dwordx2 s[6:7], s[0:1], 80
s_load_dwordx2 s[8:9], s[0:1], 96
s_and_b32 s3, s2, 7
s_mul_i32 s3, s3, 10
s_lshr_b32 s10, s2, 3
s_add_u32 s3, s3, s10          ; colgrp8
s_lshl_b32 s10, s3, 4
v_mul_u32_u24 v2, 1280, v0
v_add_u32 v2, s10, v2
v_lshlrev_b32 v1, 2, v0
v_and_b32 v50, 63, v0
v_lshlrev_b32 v50, 4, v50
v_add_u32 v50, {WS_RC}, v50""")
    for i in range(1, 6): a(f"v_add_u32 v{2+i}, {i*256*1280}, v2")
    a("s_waitcnt lgkmcnt(0)")
    addbase(a, 16, 8, WS_HID + 2048)
    a("global_load_dwordx4 v[52:55], v50, s[8:9]")
    for i in range(6): a(f"global_load_dword v{8+i}, v1, s[16:17] offset:{1024*i-2048}")
    for i in range(6): a(f"global_load_dwordx4 v[{16+4*i}:{19+4*i}], v{2+i}, s[4:5]")
    a("s_waitcnt vmcnt(12)")
    argmax256(a, 52, None, 12, 13, 14)
    a(f"""s_lshl_b32 s15, s13, 2
s_add_u32 s15, s15, {WS_IC}
v_mov_b32 v50, s15
global_load_dword v52, v50, s[8:9]
s_mul_i32 s13, s13, 2560
s_lshl_b32 s10, s3, 5
s_add_u32 s13, s13, s10
s_add_u32 s13, s13, {WS_OUTC}
v_and_b32 v50, 7, v0
v_lshlrev_b32 v50, 2, v50
v_add_u32 v51, s13, v50
global_load_dword v53, v51, s[8:9]
s_add_u32 s10, s10, {5*2560}
v_add_u32 v51, s10, v50
global_load_dword v54, v51, s[8:9]""")
    for i in range(6):
        a(f"s_waitcnt vmcnt({8-i})")
        gemv_acc(a, 40, 16 + 4 * i, 8 + i, i == 0, 14)
    reduce8(a, 40)
    a(f"""v_lshrrev_b32 v1, 4, v0
v_lshlrev_b32 v1, 3, v1
ds_write_b64 v1, v[40:41]
s_waitcnt lgkmcnt(0)
s_barrier
v_cmp_gt_u32 vcc, 8, v0
s_and_saveexec_b64 s[12:13], vcc
s_cbranch_execz k5_end
ds_read2_b32 v[4:5], v50 offset0:0 offset1:8
ds_read2_b32 v[6:7], v50 offset0:16 offset1:24
v_mov_b32 v8, s14""")
    sigmoid(a, 9, 8)
    a(f"""s_lshl_b32 s10, s3, 4
v_lshl_add_u32 v1, v0, 1, s10
s_waitcnt vmcnt(0) lgkmcnt(0)
v_mul_u32_u24 v52, 1280, v52
v_add_u32 v1, v1, v52
v_add_f32 v4, v4, v5
v_add_f32 v6, v6, v7
v_add_f32 v4, v4, v6
v_mul_f32 v4, v4, v9
v_fmac_f32 v53, v4, v54
v_cvt_pk_bf16_f32 v53, v53, v53
global_store_short v1, v53, s[6:7]
k5_end:
s_endpgm""")
    return desc("k5_kernel", 60)

def build(extra_empty=0, stamps=False):
    hdr = """; adaLN + GFNet spectral filter + mixture-of-depths MLP (generated by gen1.py)
; @launch kernel=k0_kernel grid=(240,1,1) block=(256,1,1) lds=256
; @launch kernel=k1_kernel grid=(256,1,1) block=(512,1,1) lds=10880
; @launch kernel=k2_kernel grid=(192,1,1) block=(512,1,1) lds=40960
; @launch kernel=k3_kernel grid=(256,1,1) block=(512,1,1) lds=23104
; @launch kernel=k4_kernel grid=(192,1,1) block=(256,1,1) lds=256
; @launch kernel=k5_kernel grid=(80,1,1) block=(256,1,1) lds=256
"""
    hdr += "; @launch kernel=ke_kernel grid=(256,1,1) block=(256,1,1) lds=0\n" * extra_empty
    hdr += """.amdgcn_target "amdgcn-amd-amdhsa--gfx950"
.text
"""
    a = Asm()
    ds = [k(a) for k in (k0, k1, k2, k3, k4, k5)]
    if extra_empty:
        head(a, "ke_kernel"); a("s_endpgm"); ds.append(desc("ke_kernel", 8))
    if stamps: add_stamps(a)
    return hdr + a.finalize(not stamps) + '.section .rodata,"a"\n' + "".join(ds)

if __name__ == "__main__":
    out = sys.argv[1] if len(sys.argv) > 1 else "v1.s"
    ee = int(sys.argv[2]) if len(sys.argv) > 2 else 0
    open(out, "w").write(build(ee, "--stamps" in sys.argv))
```

```python
import sys
from asmlib import *
from gen1 import head, desc, addbase
def kern(a, idx, L, W, lps, stride, share, sc=""):
    n = f"k{idx}"
    head(a, n + "_kernel")
    segb = lps * W * 4
    a(f"""s_cmp_ge_u32 s2, 256
s_cbranch_scc1 {n}_end
s_load_dwordx2 s[8:9], s[0:1], 96
s_and_b32 s3, s2, 7
s_lshl_b32 s3, s3, 5
s_lshr_b32 s10, s2, 3
s_add_u32 s3, s3, s10
s_mul_i32 s10, s3, {(L*8192 if share == 2 else segb if share else 128 if segb <= 128 else segb)}
s_add_u32 s10, s10, {(32 << 20) + idx * (24 << 20)}
v_lshrrev_b32 v1, 6, v0
v_mul_u32_u24 v1, {L*64//lps}, v1
v_and_b32 v2, 63, v0
v_lshrrev_b32 v3, {lps.bit_length()-1}, v2
v_add_u32 v1, v1, v3
s_mov_b32 s11, {stride}
v_mul_lo_u32 v1, v1, s11
v_and_b32 v2, {lps-1}, v2
v_mul_u32_u24 v2, {W*4}, v2
v_add_u32 v1, v1, v2
s_waitcnt lgkmcnt(0)""")
    addbase(a, 12, 8, "s10")
    for i in range(1, L): a(f"v_add_u32 v{4+i}, {i*(64//lps)*stride}, v1")
    a("v_mov_b32 v4, v1")
    a("s_barrier")
    suf = {1: "dword", 2: "dwordx2", 4: "dwordx4"}[W]
    for i in range(L):
        r = 40 + 4 * i
        rr = f"v{r}" if W == 1 else f"v[{r}:{r+W-1}]"
        a(f"global_load_{suf} {rr}, v{4+i}, s[12:13] {sc}")
    a("s_waitcnt vmcnt(0)")
    a("s_barrier")
    a(f"{n}_end:")
    a("s_endpgm")
    return desc(n + "_kernel", 128)
pats = eval(sys.argv[2])
hdr = "".join(f"; @launch kernel=k{i}_kernel grid=(256,1,1) block=(512,1,1) lds=0\n" for i in range(len(pats)))
hdr += '.amdgcn_target "amdgcn-amd-amdhsa--gfx950"\n.text\n'
a = Asm()
ds = [kern(a, i, *p) for i, p in enumerate(pats)]
add_stamps(a)
open(sys.argv[1], "w").write(hdr + a.finalize(False) + '.section .rodata,"a"\n' + "".join(ds))
```

```python
import sys
from asmlib import *
import gen1
from gen1 import head, desc, addbase
WS_ST = 16 << 20
def probe_load(a, argoff, L, sc, mode):
    head(a, "k7_kernel")
    a(f"""s_cmp_ge_u32 s2, 256
s_cbranch_scc1 k7_end
s_memrealtime s[20:21]
s_load_dwordx2 s[8:9], s[0:1], 96
s_load_dwordx2 s[4:5], s[0:1], {argoff}
s_getreg_b32 s30, hwreg(HW_REG_XCC_ID)
s_mul_i32 s10, s2, {L*8192}
v_lshlrev_b32 v1, 4, v0
s_waitcnt lgkmcnt(0)""")
    addbase(a, 12, 4, "s10")
    if L > 1: a("v_add_u32 v2, 8192, v1")
    a("s_barrier")
    a("s_memrealtime s[22:23]")
    for i in range(L): a(f"global_load_dwordx4 v[{8+4*i}:{11+4*i}], v{1+i}, s[12:13] {sc}")
    a(f"""s_waitcnt vmcnt(0)
s_barrier
s_memrealtime s[24:25]
s_waitcnt lgkmcnt(0)
s_lshl_b32 s10, s2, 4
s_add_u32 s10, s10, {WS_ST}
v_mov_b32 v1, s10
v_mov_b32 v4, s20
v_mov_b32 v5, s22
v_mov_b32 v6, s24
v_mov_b32 v7, s30
s_mov_b64 exec, 1
global_store_dwordx4 v1, v[4:7], s[8:9]
k7_end:
s_endpgm""")
    return desc("k7_kernel", 32)
def reporter(a, mode, mult):
    head(a, "k8_kernel")
    a(f"""s_cmp_ge_u32 s2, 1
s_cbranch_scc1 k8_end
s_memrealtime s[20:21]
s_load_dwordx2 s[8:9], s[0:1], 96
v_lshlrev_b32 v1, 6, v0
v_add_u32 v1, {WS_ST}, v1
v_xor_b32 v2, 128, v1
s_waitcnt lgkmcnt(0)""")
    for j in range(4):
        a(f"global_load_dwordx4 v[{8+4*j}:{11+4*j}], v1, s[8:9] offset:{16*j}")
        a(f"global_load_dwordx4 v[{24+4*j}:{27+4*j}], v2, s[8:9] offset:{16*j}")
    a("s_waitcnt vmcnt(0)")
    def red(r, op):
        for x in (8, 4, 2, 1): a(f"v_{op}_dpp v{r}, v{r}, v{r} row_ror:{x} row_mask:0xf bank_mask:0xf")
        a(f"v_{op}_dpp v{r}, v{r}, v{r} row_bcast:15 row_mask:0xa bank_mask:0xf")
        a(f"v_{op}_dpp v{r}, v{r}, v{r} row_bcast:31 row_mask:0xc bank_mask:0xf")
    if mode == 'lat':
        for j in range(4): a(f"v_sub_u32 v{8+4*j}, v{10+4*j}, v{9+4*j}")
        a("v_max3_u32 v8, v8, v12, v16\nv_max_u32 v8, v8, v20")
        red(8, "max_u32"); a("v_readlane_b32 s10, v8, 63")
    elif mode in ('span', 'tail'):
        for j in range(4):
            a(f"v_sub_u32 v{8+4*j}, s20, v{8+4*j}")
            a(f"v_sub_u32 v{10+4*j}, s20, v{10+4*j}")
        a("v_max3_u32 v8, v8, v12, v16\nv_max_u32 v8, v8, v20")
        a("v_min3_u32 v10, v10, v14, v18\nv_min_u32 v10, v10, v22")
        red(8, "max_u32"); red(10, "min_u32")
        a("v_readlane_b32 s10, v8, 63\nv_readlane_b32 s11, v10, 63")
        if mode == 'span': a("s_sub_u32 s10, s10, s11")
    elif mode == 'xcc':
        a("v_mov_b32 v3, 0")
        for j in range(4):
            a(f"v_cmp_ne_u32 vcc, v{11+4*j}, v{27+4*j}")
            a("v_addc_co_u32 v3, vcc, 0, v3, vcc")
        red(3, "add_u32"); a("v_readlane_b32 s10, v3, 63")
    a(f"""s_min_u32 s10, s10, 5000
s_mul_i32 s10, s10, {mult}
k8_loop:
s_memrealtime s[22:23]
s_waitcnt lgkmcnt(0)
s_sub_u32 s11, s22, s20
s_cmp_lt_u32 s11, s10
s_cbranch_scc1 k8_loop
k8_end:
s_endpgm""")
    return desc("k8_kernel", 48)
def build(argoff, L, sc, mode, mult):
    base = gen1.build()
    lines = base.split('\n')
    launches = [l for l in lines if '@launch' in l]
    hdr = "; probe\n; @launch kernel=k7_kernel grid=(256,1,1) block=(512,1,1) lds=0\n" + "\n".join(launches) + "\n; @launch kernel=k8_kernel grid=(1,1,1) block=(64,1,1) lds=0\n"
    body = base[base.index('.amdgcn_target'):]
    a = Asm()
    d = probe_load(a, argoff, L, sc, mode) + reporter(a, mode, mult)
    i = body.index('.section .rodata')
    return hdr + body[:i] + a.finalize(False) + body[i:] + d
if __name__ == "__main__":
    open("p0.s", "w").write(build(24, 1, "", 'lat', 0))
    open("p1.s", "w").write(build(24, 1, "", 'xcc', 20))
    open("p2.s", "w").write(build(24, 1, "", 'lat', 50))
    open("p3.s", "w").write(build(24, 1, "nt", 'lat', 50))
    open("p4.s", "w").write(build(72, 2, "", 'lat', 50))
    open("p5.s", "w").write(build(24, 1, "", 'tail', 1))
```

```python
import re, struct, math

def f2u(x):
    return struct.unpack('<I', struct.pack('<f', x))[0]
def fl(x):
    return "0x%08x" % f2u(x)

REG_RE = re.compile(r'(?<![\w.])([vas])(\d+)(?![\w\[])|(?<![\w.])([vas])\[(\d+):(\d+)\]|(?<![\w.])(vcc|exec|m0)(_lo|_hi)?(?![\w])')

def regs_of(tok):
    out = []
    for m in REG_RE.finditer(tok):
        if m.group(1):
            out.append(m.group(1) + m.group(2))
        elif m.group(3):
            out += [m.group(3) + str(i) for i in range(int(m.group(4)), int(m.group(5)) + 1)]
        else:
            out.append(m.group(6))
    return out

TRANS = ('v_exp_f32', 'v_log_f32', 'v_rcp_f32', 'v_rsq_f32', 'v_sqrt_f32', 'v_sin_f32', 'v_cos_f32', 'v_rcp_iflag_f32')
NODST_S = ('s_cmp', 's_branch', 's_cbranch', 's_waitcnt', 's_barrier', 's_setprio', 's_sleep', 's_nop', 's_endpgm', 's_bitcmp', 's_setpc', 's_setreg', 's_sethalt', 's_wakeup')

class Ins:
    def __init__(self, text):
        self.text = text
        t = text.split(';')[0].strip()
        self.label = None
        self.op = None
        self.w = set(); self.r = set()
        if not t or t.startswith('.'):
            if t.endswith(':'):
                self.label = t[:-1]
            return
        if t.endswith(':'):
            self.label = t[:-1]; return
        parts = t.split(None, 1)
        op = parts[0]; self.op = op
        rest = parts[1] if len(parts) > 1 else ''
        ops = []; depth = 0; cur = ''
        for ch in rest:
            if ch in '[(': depth += 1
            if ch in '])': depth -= 1
            if ch == ',' and depth == 0:
                ops.append(cur.strip()); cur = ''
            else:
                cur += ch
        if cur.strip(): ops.append(cur.strip())
        self.mods = ''
        if ops:
            last = ops[-1].split(None, 1)
            if len(last) > 1 and not op.startswith('s_waitcnt'):
                ops[-1] = last[0]; self.mods = last[1]
        self.ops = ops
        R = [regs_of(o) for o in ops]
        base = re.sub(r'_(e32|e64|dpp|sdwa)$', '', op)
        self.base = base
        self.valu = op.startswith('v_')
        self.mfma = op.startswith('v_mfma')
        self.trans = base in TRANS
        self.dpp = op.endswith('_dpp') or 'row_' in self.mods or 'quad_perm' in self.mods or 'wave_' in self.mods
        self.ds = op.startswith('ds_')
        self.vmem = op.startswith(('buffer_', 'global_', 'flat_'))
        self.smem = op.startswith(('s_load', 's_buffer_load', 's_memtime', 's_memrealtime', 's_atomic'))
        self.salu = op.startswith('s_') and not self.smem
        self.dot = base.startswith('v_dot')
        self.ldsdma = False
        self.store_data = set()
        allr = lambda L: set(x for l in L for x in l)
        if self.valu:
            if base == 'v_nop': return
            self.w = set(R[0]); self.r = allr(R[1:])
            if base.startswith('v_cmpx'): self.w.add('exec')
            if base in ('v_add_co_u32', 'v_sub_co_u32', 'v_subrev_co_u32', 'v_addc_co_u32', 'v_subb_co_u32', 'v_mad_u64_u32', 'v_div_scale_f32'):
                self.w |= set(R[1]); self.r = allr(R[2:])
            if base in ('v_fmac_f32', 'v_pk_fmac_f16', 'v_dot2c_f32_bf16', 'v_writelane_b32') or self.dpp or op.endswith('_sdwa'):
                self.r |= set(R[0])
            if base.startswith('v_permlane') or base == 'v_swap_b32':
                self.w = allr(R); self.r = allr(R)
            if self.mfma:
                self.D = R[0]; self.A = R[1]; self.B = R[2]; self.C = R[3]
                self.passes = 8 if '32x32x16' in op else 4
                assert '16x16x32' in op or '32x32x16' in op, op
        elif self.ds:
            if op.startswith(('ds_read', 'ds_bpermute', 'ds_permute', 'ds_swizzle')) or '_rtn' in op:
                self.w = set(R[0]); self.r = allr(R[1:])
                if 'd16' in op: self.r |= set(R[0])
            else:
                self.r = allr(R)
        elif self.vmem:
            if op in ('buffer_wbl2', 'buffer_inv'): return
            if '_lds_' in op or re.search(r'\blds\b', self.mods):
                self.ldsdma = True; self.r = allr(R) | {'m0'}
            elif '_load' in op:
                self.w = set(R[0]); self.r = allr(R[1:])
                if 'd16' in op: self.r |= set(R[0])
            elif 'atomic' in op:
                self.r = allr(R)
                if re.search(r'\bsc0\b', self.mods):
                    self.w = set(R[0])
                    if op.startswith('global'): self.r = allr(R[1:])
            else:
                self.r = allr(R)
                if op.endswith(('x3', 'x4')):
                    self.store_data = set(R[1] if op.startswith('global') else R[0])
        elif self.smem:
            self.w = set(R[0]); self.r = allr(R[1:])
        else:
            if op.startswith(NODST_S):
                self.r = allr(R)
            else:
                self.w = set(R[0]); self.r = allr(R[1:])
                if 'saveexec' in op: self.w.add('exec'); self.r.add('exec')
                if op.startswith(('s_addk', 's_mulk', 's_cmov', 's_bitset')): self.r |= set(R[0])
    def states(self):
        if self.op is None: return 0
        if self.op == 's_nop': return int(self.ops[0], 0) + 1
        return 1

def need(p, c):
    n = 0
    vw = set(x for x in p.w if x[0] in 'va' and x != 'vcc')
    sw = set(x for x in p.w if x[0] == 's' or x == 'vcc')
    if p.valu and not p.mfma:
        if c.mfma and (vw & c.r): n = max(n, 3 if p.dot else 2)
        if p.trans and c.valu and not c.trans and (vw & c.r): n = max(n, 1)
        if c.valu and (sw & c.r):
            n = max(n, 2)
            if c.base in ('v_readlane_b32', 'v_writelane_b32') and (sw & set(regs_of(c.ops[2]))): n = max(n, 4)
        if c.vmem and (sw & c.r): n = max(n, 5)
        if c.valu and c.dpp and (vw & c.r): n = max(n, 2)
        if c.base in ('v_readlane_b32', 'v_readfirstlane_b32') and (vw & c.r): n = max(n, 1)
        if c.valu and c.base.startswith('v_permlane') and (vw & c.r): n = max(n, 2)
        if 'exec' in p.w:
            if c.valu and c.dpp: n = max(n, 5)
            if c.mfma or c.base in ('v_readlane_b32', 'v_readfirstlane_b32', 'v_writelane_b32') or c.base.startswith('v_permlane'): n = max(n, 4)
            if c.valu and 'exec' in c.r: n = max(n, 2)
        if p.dot and c.valu and (vw & (c.r | c.w)):
            if c.base == p.base and not (vw & set(regs_of(c.ops[1]) + regs_of(c.ops[2]))): pass
            else: n = max(n, 3)
        if (p.op.endswith('_sdwa') and 'dst_sel:DWORD' not in p.mods) and c.valu and (vw & (c.r | c.w)): n = max(n, 1)
    if p.mfma:
        D = set(p.D)
        big = {4: 8, 8: 12}[p.passes]
        if c.mfma:
            if D & (set(c.A) | set(c.B)): n = max(n, big)
            if D & set(c.C):
                if not (c.C == p.D and c.passes == p.passes): n = max(n, big - 2)
            elif D & set(c.D): n = max(n, big)
        elif (c.valu or c.vmem or c.ds) and (D & (c.r | c.w)): n = max(n, big)
        if c.valu and not c.mfma and (set(p.C) & c.w): n = max(n, {4: 3, 8: 7}[p.passes])
    if p.store_data and (p.store_data & c.w):
        n = max(n, 2 if c.valu else 1)
    if p.salu and 'm0' in p.w and (c.ldsdma or 'addtid' in (c.op or '')): n = max(n, 1)
    return n

class Asm:
    def __init__(self):
        self.lines = []
    def __call__(self, text):
        for l in text.split('\n'):
            self.lines.append(l.strip())
    def finalize(self, check_wait=True):
        ins = [Ins(l) for l in self.lines]
        out = []
        targets = {}
        for i, x in enumerate(ins):
            if x.op and x.op.startswith(('s_branch', 's_cbranch')):
                targets.setdefault(x.ops[0], []).append(i)
        extra = [0] * len(ins)
        def required(i):
            c = ins[i]; worst = 0
            stack = [(i - 1, 0)]; seen = set()
            while stack:
                j, dist = stack.pop()
                while j >= 0 and dist < 13:
                    if (j, dist) in seen: break
                    seen.add((j, dist))
                    p = ins[j]
                    if p.label:
                        for b in targets.get(p.label, []):
                            stack.append((b - 1, dist + 1 + extra[b]))
                        j -= 1; continue
                    if p.op is None:
                        j -= 1; continue
                    if p.op in ('s_branch', 's_endpgm', 's_setpc_b64'): break
                    worst = max(worst, need(p, c) - dist)
                    dist += p.states() + extra[j]
                    j -= 1
            return worst
        for i, x in enumerate(ins):
            if x.op and x.op != 's_nop':
                extra[i] = max(0, required(i))
        res = []
        for i, x in enumerate(ins):
            if extra[i]: res.append('    s_nop %d' % (extra[i] - 1))
            res.append(x.text if (x.label or x.op is None) else '    ' + x.text)
        if check_wait: self.check_waits(ins)
        self.nops = sum(extra)
        return '\n'.join(res) + '\n'
    def check_waits(self, ins):
        vm = []; lg = []
        for x in ins:
            if x.op is None:
                continue
            if x.op in ('s_endpgm', 's_branch'):
                if x.op == 's_endpgm': vm = []; lg = []
                continue
            if x.op == 's_waitcnt':
                m = re.search(r'vmcnt\((\d+)\)', x.text)
                if m:
                    n = int(m.group(1)); vm = vm[max(0, len(vm) - n):] if n else []
                    if n > len(vm): pass
                m = re.search(r'lgkmcnt\((\d+)\)', x.text)
                if m:
                    n = int(m.group(1))
                    if n == 0: lg = []
                    elif not any(k == 's' for k, _ in lg): lg = lg[len(lg) - n:] if n < len(lg) else lg
                continue
            touch = x.r | x.w
            for q, nm in ((vm, 'vmcnt'), (lg, 'lgkmcnt')):
                for k, d in q:
                    if d & touch and not ('d16' in x.op and k != 's' and not (d & (x.r - x.w))):
                        raise Exception('missing %s wait before: %s (regs %s)' % (nm, x.text, sorted(d & touch)))
            if x.vmem and x.op not in ('buffer_wbl2', 'buffer_inv'): vm.append(('v', set(x.w)))
            elif x.op in ('buffer_wbl2', 'buffer_inv'): vm.append(('v', set()))
            elif x.ds: lg.append(('d', set(x.w)))
            elif x.smem: lg.append(('s', set(x.w)))

WS_STAMP = 16 << 20
def add_stamps(a, ws=8, sb=70, swave=69, pick_wave=0):
    out = []; k = -1; n = 0; name = None; first = False; desc = []
    for ln in a.lines:
        m = re.match(r'^(k(\d+))_kernel:', ln)
        if m:
            name = m.group(1); k = int(m.group(2)); n = 0; first = True
            out.append(ln); continue
        if first and ln.startswith('s_cbranch_scc1'):
            out.append('s_cbranch_scc1 %s_exit' % name)
            out.append('s_memrealtime s[%d:%d]' % (sb, sb + 1)); n = 1
            for j in range(1, 15): out.append('s_mov_b32 s%d, 0' % (sb + 2 * j))
            out.append('v_readfirstlane_b32 s%d, v0' % swave)
            out.append('s_lshr_b32 s%d, s%d, 6' % (swave, swave))
            first = False; continue
        if name and ln == name + '_end:':
            out.append(ln)
            out.append('s_waitcnt vmcnt(0)')
            out.append('s_memrealtime s[%d:%d]' % (sb + 30, sb + 31))
            out.append('s_waitcnt lgkmcnt(0)')
            out.append('s_cmp_lg_u32 s%d, %d' % (swave, pick_wave))
            out.append('s_cbranch_scc1 %s_exit' % name)
            out.append('s_lshl_b32 s68, s2, 6')
            out.append('s_add_u32 s68, s68, %d' % (WS_STAMP + k * 512 * 64))
            out.append('s_mov_b64 exec, 1')
            out.append('v_mov_b32 v2, s68')
            for j in range(16):
                out.append('v_mov_b32 v3, s%d' % (sb + 2 * j))
                out.append('global_store_dword v2, v3, s[%d:%d] offset:%d' % (ws, ws + 1, 4 * j))
            out.append('%s_exit:' % name)
            continue
        if ln.startswith('s_waitcnt vmcnt') and n < 14 and name:
            out.append('s_memrealtime s[%d:%d]' % (sb + 2 * n, sb + 2 * n + 1)); desc.append((k, n, 'before ' + ln)); n += 1
        out.append(ln)
        if (ln.startswith('s_waitcnt vmcnt') or ln.startswith('s_barrier') or ln.startswith('; stamp')) and n < 15 and name:
            out.append('s_memrealtime s[%d:%d]' % (sb + 2 * n, sb + 2 * n + 1)); desc.append((k, n, 'after ' + ln)); n += 1
    a.lines = out
    for d in desc: print(d)

def add_stamps2(a, kn, ws, pick=0, sb=70):
    out = []; n = 1; first = False; names = ['start']
    for ln in a.lines:
        if ln == kn + ':':
            first = True; out.append(ln); continue
        if first and ln.startswith('s_cbranch_scc1'):
            out.append('s_cbranch_scc1 k0_exit')
            out.append('s_memrealtime s[%d:%d]' % (sb, sb + 1))
            for j in range(1, 15): out.append('s_mov_b32 s%d, 0' % (sb + 2 * j))
            first = False; continue
        if ln == 'k0_end:':
            out.append(ln)
            out.append('s_waitcnt vmcnt(0)')
            out.append('s_memrealtime s[%d:%d]' % (sb + 30, sb + 31))
            out.append('s_waitcnt lgkmcnt(0)')
            out.append('s_lshl_b32 s68, s2, 6')
            out.append('s_lshl_b32 s69, s30, 15')
            out.append('s_add_u32 s68, s68, s69')
            out.append('s_add_u32 s68, s68, %d' % WS_STAMP)
            out.append('s_mov_b64 exec, 1')
            out.append('v_mov_b32 v2, s68')
            for j in range(16):
                out.append('v_mov_b32 v3, s%d' % (sb + 2 * j))
                out.append('global_store_dword v2, v3, s[%d:%d] offset:%d' % (ws, ws + 1, 4 * j))
            out.append('k0_exit:')
            continue
        if ln.startswith('; stamp'):
            assert n < 15
            out.append('s_memrealtime s[%d:%d]' % (sb + 2 * n, sb + 2 * n + 1)); names.append(ln.split()[2]); n += 1
            continue
        out.append(ln)
    a.lines = out
    names += ['-'] * (15 - len(names)) + ['end']
    a.lines.insert(0, '; STAMPNAMES ' + ' '.join(names))

def _val(tok, env):
    tok = tok.strip()
    m = re.fullmatch(r's(\d+)', tok)
    if m: return env.get(tok)
    try:
        return int(tok, 0) & 0xffffffff
    except ValueError:
        return None

def check_paths(lines, wave_sgpr, wgs, waves):
    ins = [Ins(l) for l in lines]
    labels = {x.label: i for i, x in enumerate(ins) if x.label}
    M = 0xffffffff
    BIN = {'s_add_u32': lambda x, y: x + y, 's_sub_u32': lambda x, y: x - y, 's_mul_i32': lambda x, y: x * y,
           's_and_b32': lambda x, y: x & y, 's_or_b32': lambda x, y: x | y, 's_lshl_b32': lambda x, y: x << (y & 31),
           's_lshr_b32': lambda x, y: x >> (y & 31), 's_max_u32': max, 's_min_u32': min, 's_xor_b32': lambda x, y: x ^ y,
           's_bfe_u32': lambda x, y: (x >> (y & 31)) & ((1 << ((y >> 16) & 127)) - 1)}
    CMP = {'eq': lambda x, y: x == y, 'lg': lambda x, y: x != y, 'lt': lambda x, y: x < y, 'ge': lambda x, y: x >= y,
           'gt': lambda x, y: x > y, 'le': lambda x, y: x <= y}
    res = {}
    for wg in wgs:
        for wv in waves:
            seen = set(); bars = set()
            stack = [(0, {'s2': wg}, None, (), (), 0)]
            while stack:
                pc, env, scc, vm, lg, nb = stack.pop()
                env = dict(env)
                while True:
                    x = ins[pc]
                    if x.label:
                        key = (pc, scc, vm, lg, nb, tuple(sorted(env.items())))
                        if key in seen: break
                        seen.add(key)
                    if x.op is None:
                        pc += 1; continue
                    op = x.op
                    if op == 's_endpgm':
                        bars.add(nb); break
                    if op == 's_branch':
                        pc = labels[x.ops[0]]; continue
                    if op.startswith('s_cbranch'):
                        tk = None
                        if op == 's_cbranch_scc1' and scc is not None: tk = scc
                        if op == 's_cbranch_scc0' and scc is not None: tk = not scc
                        if tk is None:
                            stack.append((labels[x.ops[0]], env, scc, vm, lg, nb)); pc += 1
                        else:
                            pc = labels[x.ops[0]] if tk else pc + 1
                        continue
                    if op == 's_barrier':
                        nb += 1; pc += 1; continue
                    if op == 's_waitcnt':
                        m = re.search(r'vmcnt\((\d+)\)', x.text)
                        if m:
                            n = int(m.group(1)); vm = vm[max(0, len(vm) - n):] if n else ()
                        m = re.search(r'lgkmcnt\((\d+)\)', x.text)
                        if m:
                            n = int(m.group(1))
                            if n == 0: lg = ()
                            else:
                                d = [e for e in lg if e[0] == 'd']; s_ = [e for e in lg if e[0] == 's']
                                lg = tuple(s_) + tuple(d[max(0, len(d) - n):])
                        pc += 1; continue
                    touch = x.r | x.w
                    for q, nm in ((vm, 'vmcnt'), (lg, 'lgkmcnt')):
                        for k, d in q:
                            if d & touch:
                                raise Exception('wg %d wave %d: missing %s wait before: %s (regs %s)' % (wg, wv, nm, x.text, sorted(d & touch)))
                    if x.vmem: vm = vm + (('v', frozenset(x.w)),)
                    elif x.ds: lg = lg + (('d', frozenset(x.w)),)
                    elif x.smem: lg = lg + (('s', frozenset(x.w)),)
                    if len(vm) > 63: raise Exception('vmcnt overflow at ' + x.text)
                    newv = None; known = False
                    if op in BIN:
                        u, v = _val(x.ops[1], env), _val(x.ops[2], env)
                        if u is not None and v is not None: newv = BIN[op](u, v) & M; known = True
                        if op != 's_mul_i32': scc = None
                    elif op in ('s_mov_b32', 's_movk_i32'):
                        newv = _val(x.ops[1], env); known = newv is not None
                    elif op == 's_cselect_b32':
                        if scc is not None:
                            newv = _val(x.ops[1] if scc else x.ops[2], env); known = newv is not None
                    elif op.startswith('s_cmp_') and op.endswith('u32'):
                        u, v = _val(x.ops[0], env), _val(x.ops[1], env)
                        scc = CMP[op.split('_')[2]](u, v) if (u is not None and v is not None) else None
                    elif op == 'v_readfirstlane_b32' and x.ops[0] == 's%d' % wave_sgpr:
                        newv = wv; known = True
                    elif x.salu and op not in ('s_mov_b64', 's_nop', 's_sleep', 's_setprio', 's_ff1_i32_b32', 's_ff1_i32_b64'):
                        scc = None
                    for r in x.w: env.pop(r, None)
                    if known and x.ops[0] != 's34': env[x.ops[0]] = newv
                    pc += 1
            res[(wg, wv)] = bars
    for wg in wgs:
        print('wg', wg, 'barriers', [sorted(res[(wg, wv)]) for wv in waves])
```

```python
import math, sys
from asmlib import *

NAME = "adaLN_cond__spectral_gfnet__moe_arch_mod__prompt"
KN = NAME + "_kernel"
WS_MODG = 4096
WS_FL1 = 65536
WS_FL2 = 73728
WS_RG = 81920
WS_WIN = 86016
WS_PART = 98304
WS_H2G = 393216
WS_Z1 = 2 << 20
WS_Z2 = 6 << 20
L_MOD1 = 0
L_MOD2 = 5120
L_P1 = 15360
L_P2 = 26240
IS = 80; KS = 16 * IS; BUF = 16 * KS
L_P3 = L_P2 + 2 * BUF
RS = 576; P3SZ = 40 * RS
L_R = L_P3 + 2 * P3SZ
L_MLP = L_R + 64
LDS_BYTES = L_MLP + 1024
LOG2E = math.log2(math.e)
C1 = math.cos(2 * math.pi / 5); C2 = math.cos(4 * math.pi / 5)
S1 = math.sin(2 * math.pi / 5); S2 = math.sin(4 * math.pi / 5)
SPIN = 100000

sX, sWR, sWI, sRW, sGATE, sUP, sDOWN, sC, sWM, sOUT, sWS = 4, 6, 8, 12, 14, 16, 18, 20, 22, 24, 28
sWAVE, sTAG, sK5, sKH, sCNT = 30, 31, 32, 33, 34
sG = 35
sSGN = 36
sROW = 37
sJ = 38
sA = 40
sT = 48
sK = 58
sPL, sPH = 66, 67
vL4, vC16, vG = 1, 2, 3
XR = 4
vA0, vA1, vA2 = 9, 10, 11
F32 = 12
CM, SM, NSM = 44, 48, 52
TWC, TWS = 56, 64
M3 = 44
WR, WI = 72, 80
MA, F16 = 88, 104
T = 112
GU, DN = 160, 200
NV = 236

OPT = dict(wearly=1, outsc="", zsc="sc1")

def P(r, n=2): return f"s[{r}:{r+n-1}]"
def V(r, n): return f"v[{r}:{r+n-1}]"

def addbase(a, d, s, off):
    a(f"s_add_u32 s{d}, s{s}, {off}")
    a(f"s_addc_u32 s{d+1}, s{s+1}, 0")
def sigmoid(a, d, s):
    a(f"v_mul_f32 v{d}, {fl(-LOG2E)}, v{s}")
    a(f"v_exp_f32 v{d}, v{d}")
    a(f"v_add_f32 v{d}, 1.0, v{d}")
    a(f"v_rcp_f32 v{d}, v{d}")
def sincos(a, c, s, th):
    a(f"v_cos_f32 v{c}, v{th}")
    a(f"v_sin_f32 v{s}, v{th}")
def mfma(a, d, x, y, c):
    cs = "0" if c is None else V(c, 4)
    a(f"v_mfma_f32_16x16x32_bf16 {V(d,4)}, {V(x,4)}, {V(y,4)}, {cs}")
def dpp(a, op, d, s, ctl, rm="0xf"):
    a(f"v_{op}_dpp v{d}, v{s}, v{d} {ctl} row_mask:{rm} bank_mask:0xf")
def wave_sum(a, regs, sdst):
    for r in (8, 4, 2, 1):
        for x in regs: dpp(a, "add_f32", x, x, f"row_ror:{r}")
    for x in regs: dpp(a, "add_f32", x, x, "row_bcast:15", "0xa")
    for x in regs: dpp(a, "add_f32", x, x, "row_bcast:31", "0xc")
    for x, s in zip(regs, sdst): a(f"v_readlane_b32 s{s}, v{x}, 63")
def pk(a, op, d, x, y, z=None, mods=""):
    f = lambda o: o if isinstance(o, str) else V(o, 2)
    if z is None: a(f"v_pk_{op}_f32 {f(d)}, {f(x)}, {f(y)} {mods}")
    else: a(f"v_pk_{op}_f32 {f(d)}, {f(x)}, {f(y)}, {f(z)} {mods}")
def cmul_tw(a, tr, ti, c, s, t):
    for h in (0, 2):
        pk(a, "mul", t + h, ti + h, s + h)
        pk(a, "mul", ti + h, ti + h, c + h)
    for h in (0, 2):
        pk(a, "fma", ti + h, tr + h, s + h, ti + h, "neg_lo:[1,0,0] neg_hi:[1,0,0]")
        pk(a, "fma", tr + h, tr + h, c + h, t + h)
def cvt(a, d, x, y): a(f"v_cvt_pk_bf16_f32 v{d}, {x}, {y}")
def unpack(a, d, s):
    a(f"v_lshlrev_b32 v{d}, 16, v{s}")
    a(f"v_and_b32 v{d+1}, 0xffff0000, v{s}")
def reduce8(a, acc, rors):
    for j in range(4): a(f"v_permlane32_swap_b32 v{acc+j}, v{acc+4+j}")
    for j in range(4): a(f"v_add_f32 v{acc+j}, v{acc+j}, v{acc+4+j}")
    for j in range(2): a(f"v_permlane16_swap_b32 v{acc+j}, v{acc+2+j}")
    for j in range(2): a(f"v_add_f32 v{acc+j}, v{acc+j}, v{acc+2+j}")
    for r in rors:
        for j in range(2): dpp(a, "add_f32", acc + j, acc + j, f"row_ror:{r}")
def signmask(a, d, src):
    a(f"v_and_b32 v{d}, 1, v{src}")
    a(f"v_mul_u32_u24 v{d}, 0x8000, v{d}")
    a(f"v_lshl_or_b32 v{d}, v{d}, 16, v{d}")
_lab = [0]
def lab(s):
    _lab[0] += 1
    return f"L{s}_{_lab[0]}"
def poll(a, loads, tagregs, tmp):
    l = lab("poll"); d = lab("ok")
    a(f"s_mov_b32 s{sCNT}, {SPIN}")
    a(f"{l}:")
    for x in loads: a(x)
    a("s_waitcnt vmcnt(0)")
    if len(tagregs) == 1:
        a(f"v_cmp_ne_u32 vcc, s{sTAG}, v{tagregs[0]}")
    else:
        def red(op, t):
            rs = list(tagregs)
            a(f"v_{op}3_u32 v{t}, v{rs[0]}, v{rs[1]}, s{sTAG}"); rs = rs[2:]
            while len(rs) >= 2:
                a(f"v_{op}3_u32 v{t}, v{t}, v{rs[0]}, v{rs[1]}"); rs = rs[2:]
            if rs: a(f"v_{op}_u32 v{t}, v{t}, v{rs[0]}")
        red("min", tmp); red("max", tmp + 1)
        a(f"v_cmp_ne_u32 vcc, v{tmp}, v{tmp+1}")
    a(f"s_cbranch_vccz {d}")
    a(f"s_sub_u32 s{sCNT}, s{sCNT}, 1")
    a(f"s_cbranch_scc0 {l}")
    a(f"{d}:")

MW, MC, MACC = 12, 52, 62
def mod_addr(a):
    a(f"""s_and_b32 s{sT+9}, s2, 1
s_bfe_u32 s{sT+8}, s2, 0x20001
s_mul_i32 s{sT+8}, s{sT+8}, 30
s_lshr_b32 s{sT}, s2, 3
s_add_u32 s{sT+8}, s{sT+8}, s{sT}
s_cmp_eq_u32 s{sWAVE}, 6
s_cselect_b32 s{sT}, 120, 0
s_add_u32 s{sT+8}, s{sT+8}, s{sT}
s_mul_i32 s{sT}, s{sT+9}, 320
v_and_b32 v{vA1}, 62, v0
v_add_u32 v{vA1}, s{sT}, v{vA1}
v_mul_u32_u24 v{vA0}, 7680, v{vA1}
v_and_b32 v{vA2}, 1, v0
v_lshl_add_u32 v{vA0}, v{vA2}, 4, v{vA0}
s_lshl_b32 s{sT}, s{sT+8}, 5
v_add_u32 v{vA0}, s{sT}, v{vA0}
v_lshlrev_b32 v{vA1}, 1, v{vA1}""")
def mod_loads(a):
    for i in range(5): a(f"global_load_dword v{MC+i}, v{vA1}, {P(sC)} offset:{128*i}")
    addbase(a, sA, sWM, 7680)
    for i in range(5):
        a(f"global_load_dwordx4 {V(MW+8*i,4)}, v{vA0}, {P(sWM)}")
        a(f"global_load_dwordx4 {V(MW+8*i+4,4)}, v{vA0}, {P(sA)}")
        if i < 4: a(f"v_add_u32 v{vA0}, {64*7680}, v{vA0}")
def mod_compute(a, after):
    a(f"s_waitcnt vmcnt({10+after})")
    t = MACC
    for i in range(5):
        unpack(a, t, MC + i)
        sigmoid(a, t + 2, t); sigmoid(a, t + 3, t + 1)
        pk(a, "mul", t, t, t + 2)
        cvt(a, MC + i, f"v{t}", f"v{t+1}")
    t = MC + 5
    for i in range(5):
        a(f"s_waitcnt vmcnt({8-2*i+after})")
        for c in range(4):
            a(f"v_perm_b32 v{t+(2*c)%4}, v{MW+8*i+4+c}, v{MW+8*i+c}, s{sPL}")
            a(f"v_perm_b32 v{t+(2*c+1)%4}, v{MW+8*i+4+c}, v{MW+8*i+c}, s{sPH}")
            for hl in range(2):
                if i == 0: a(f"v_dot2_f32_bf16 v{MACC+2*c+hl}, v{t+(2*c+hl)%4}, v{MC+i}, 0")
                else: a(f"v_dot2_f32_bf16 v{MACC+2*c+hl}, v{t+(2*c+hl)%4}, v{MC+i}, v{MACC+2*c+hl}")
    reduce8(a, MACC, (8, 4, 2))
    a(f"""s_mul_i32 s{sT}, s{sT+9}, {3840*8}
s_lshl_b32 s{sT+1}, s{sT+8}, 7
s_add_u32 s{sT}, s{sT}, s{sT+1}
s_add_u32 s{sT}, s{sT}, {WS_MODG}
v_lshlrev_b32 v{vA2}, 6, v{vA2}
v_lshl_add_u32 v{vA2}, v{vG}, 4, v{vA2}
v_add_u32 v{vA2}, s{sT}, v{vA2}
v_mov_b32 v{MACC+2}, v{MACC+1}
v_mov_b32 v{MACC+1}, s{sTAG}
v_mov_b32 v{MACC+3}, s{sTAG}
s_mov_b32 exec_lo, 0x00030003
s_mov_b32 exec_hi, 0x00030003
global_store_dwordx4 v{vA2}, {V(MACC,4)}, {P(sWS)} sc1
s_mov_b64 exec, -1""")

def rnd_pair(a, r, t):
    cvt(a, t, f"v{r}", f"v{r+1}")
    unpack(a, r, t)

def mod_gather(a, secs, ldsoff, vtid8, R):
    loads = []; tags = []
    for n, sec in enumerate(secs):
        for h in range(2):
            r = R + 8 * n + 4 * h
            addbase(a, sA + 0, sWS, 0) if False else None
            loads.append((r, WS_MODG + h * 3840 * 8 + sec * 5120))
            tags += [r + 1, r + 3]
    A = R + 8 * len(secs) + 2
    ls = []
    for k, (r, off) in enumerate(loads):
        a(f"v_add_u32 v{A+k}, {off}, v{vtid8}")
        ls.append(f"global_load_dwordx4 {V(r,4)}, v{A+k}, {P(sWS)} sc1")
    return ls, tags
def mod_finish(a, secs, ldsoff, vtid8, R):
    t = R + 8 * len(secs)
    for n, sec in enumerate(secs):
        r = R + 8 * n
        d = R + 8 * (n - n % 2) + 2 * (n % 2)
        a(f"v_add_f32 v{t}, v{r}, v{r+4}")
        a(f"v_add_f32 v{t+1}, v{r+2}, v{r+6}")
        cvt(a, t, f"v{t}", f"v{t+1}")
        unpack(a, d, t)
        if sec in (1, 4):
            pk(a, "add", d, d, "1.0", None, "op_sel_hi:[1,0]")
            rnd_pair(a, d, t)
        if sec == 2:
            a(f"v_mul_f32 v{d}, {fl(1.0/(2048*640))}, v{d}")
            a(f"v_mul_f32 v{d+1}, {fl(1.0/(2048*640))}, v{d+1}")
        if n % 2: a(f"ds_write_b128 v{vtid8}, {V(d-2,4)} offset:{ldsoff+5120*(n//2)}")

def consts_p1(a):
    a(f"""v_lshrrev_b32 v{T+8}, 2, v{vC16}
s_lshl_b32 s{sT}, s{sKH}, 2
v_add_u32 v{T+8}, s{sT}, v{T+8}          ; k1
v_and_b32 v{T+9}, 3, v{vC16}
v_mad_u32_u24 v{T+9}, v{T+9}, 5, s{sK5}   ; kappa
v_cvt_f32_u32 v{T+9}, v{T+9}
v_lshl_add_u32 v{T+10}, v{vG}, 9, s2
v_mul_u32_u24 v{T}, v{T+8}, v{T+10}
v_lshl_add_u32 v{T+1}, v{T+8}, 8, v{T}
v_and_b32 v{T}, 2047, v{T}
v_and_b32 v{T+1}, 2047, v{T+1}
v_cvt_f32_u32 v{T}, v{T}
v_cvt_f32_u32 v{T+1}, v{T+1}
v_mul_f32 v{T}, {fl(1/2048)}, v{T}
v_mul_f32 v{T+1}, {fl(1/2048)}, v{T+1}
v_mul_f32 v{T+2}, {fl(1/20)}, v{T+9}""")
    for h in range(2):
        for p in range(2):
            for u in range(2):
                d1 = 2 * p + u
                if d1 == 0: th = T + h
                else:
                    th = T + 3
                    a(f"v_fmamk_f32 v{th}, v{T+2}, {fl(d1)}, v{T+h}")
                sincos(a, T + 4 + u, T + 6 + u, th)
            cvt(a, CM + 2 * h + p, f"v{T+4}", f"v{T+5}")
            cvt(a, SM + 2 * h + p, f"v{T+6}", f"v{T+7}")
            cvt(a, NSM + 2 * h + p, f"-v{T+6}", f"-v{T+7}")
    a(f"""v_mul_f32 v{T}, {fl(1/640)}, v{T+9}
v_lshlrev_b32 v{T+1}, 2, v{vG}
v_cvt_f32_u32 v{T+1}, v{T+1}            ; 4g
v_mul_f32 v{T+2}, v{T+1}, v{T}""")
    for et in range(2):
        for rr in range(4):
            o = 16 * et + rr
            if o == 0: th = T + 2
            else:
                th = T + 3
                a(f"v_fmamk_f32 v{th}, v{T}, {fl(o)}, v{T+2}")
            sincos(a, TWC + 4 * et + rr, TWS + 4 * et + rr, th)
    a(f"""v_cvt_f32_u32 v{T}, v{vC16}
v_mul_f32 v{T}, {fl(1/32)}, v{T}
v_mul_f32 v{T+2}, v{T+1}, v{T}""")
    signmask(a, T + 8, 0)
    for r in range(4):
        if r == 0: th = T + 2
        else:
            th = T + 3
            a(f"v_fmamk_f32 v{th}, v{T}, {fl(r)}, v{T+2}")
        sincos(a, T + 4, T + 5, th)
        sg = ("", "-") if r % 2 == 0 else ("-", "")
        cvt(a, F32 + r, f"v{T+4}", f"v{T+5}")
        cvt(a, F32 + 4 + r, f"-v{T+5}", f"v{T+4}")
        cvt(a, F32 + 8 + r, f"{sg[0]}v{T+4}", f"{sg[0]}v{T+5}")
        cvt(a, F32 + 12 + r, f"{sg[1]}v{T+5}", f"{sg[0]}v{T+4}")
    for j in range(16): a(f"v_xor_b32 v{F32+16+j}, v{T+8}, v{F32+j}")

def consts_p2(a, t):
    a(f"""v_cvt_f32_u32 v{t}, v{vC16}
v_mul_f32 v{t}, {fl(1/256)}, v{t}
v_lshlrev_b32 v{t+1}, 6, v{vG}
s_lshl_b32 s{sT}, s{sWAVE}, 1
v_add_u32 v{t+2}, s{sT}, v{t+1}
v_cvt_f32_u32 v{t+1}, v{t+1}
v_cvt_f32_u32 v{t+2}, v{t+2}
v_mul_f32 v{t+1}, v{t+1}, v{t}
v_mul_f32 v{t+2}, v{t+2}, v{t}""")
    for (dst, bs, off) in ((MA, t + 2, 0), (MA + 8, t + 2, 1), (F16, t + 1, 0)):
        for r in range(4):
            o = 16 * r + off
            if o == 0: th = bs
            else:
                th = t + 3
                a(f"v_fmamk_f32 v{th}, v{t}, {fl(o)}, v{bs}")
            sincos(a, t + 4, t + 5, th)
            cvt(a, dst + r, f"v{t+4}", f"v{t+5}")
            cvt(a, dst + 4 + r, f"-v{t+5}", f"v{t+4}")

def consts_p3(a, t):
    a(f"""v_cvt_f32_u32 v{t+9}, s{sK5}
v_cvt_f32_u32 v{t}, v{vC16}
v_mul_f32 v{t}, {fl(1/640)}, v{t}
v_add_f32 v{t+1}, {fl(16/640)}, v{t}""")
    for et in range(2):
        a(f"v_mul_f32 v{t+2}, v{t+9}, v{t+et}")
        for r in range(4):
            if r == 0: th = t + 2
            else:
                th = t + 3
                a(f"v_fmamk_f32 v{th}, v{t+et}, {fl(5*r)}, v{t+2}")
            sincos(a, TWC + 4 * et + r, TWS + 4 * et + r, th)
    a(f"""v_lshrrev_b32 v{t+2}, 2, v{vC16}
v_lshl_add_u32 v{t+2}, v{t+2}, 8, s2
s_lshl_b32 s{sT}, s{sKH}, 2
v_add_u32 v{t}, s{sT}, v{vG}
v_mul_u32_u24 v{t}, v{t}, v{t+2}
v_and_b32 v{t}, 2047, v{t}
v_cvt_f32_u32 v{t}, v{t}
v_and_b32 v{t+2}, 3, v{vC16}
v_cvt_f32_u32 v{t+2}, v{t+2}
v_mul_f32 v{t+2}, {fl(1/20)}, v{t+2}
v_mul_f32 v{t+3}, v{t+2}, v{t+9}
v_fmamk_f32 v{t}, v{t}, {fl(1/2048)}, v{t+3}""")
    signmask(a, t + 8, vG)
    for p in range(2):
        for u in range(2):
            j1 = 2 * p + u
            if j1 == 0: th = t
            else:
                th = t + 3
                a(f"v_fmamk_f32 v{th}, v{t+2}, {fl(5*j1)}, v{t}")
            sincos(a, t + 4 + u, t + 6 + u, th)
        cvt(a, M3 + p, f"-v{t+6}", f"-v{t+7}")
        cvt(a, M3 + 2 + p, f"v{t+4}", f"v{t+5}")
        cvt(a, M3 + 4 + p, f"v{t+6}", f"v{t+7}")
    for j in range(6): a(f"v_xor_b32 v{M3+6+j}, v{t+8}, v{M3+j}")

def w_gather(a, t):
    a(f"""s_and_b32 s{sT}, s2, 7
s_lshr_b32 s{sT+1}, s2, 6
s_bfe_u32 s{sT+2}, s2, 0x30003     ; jg
s_sub_u32 s{sT+3}, 0, s{sT}
s_and_b32 s{sT+3}, s{sT+3}, 7
s_cmp_lt_u32 s{sT+2}, 4
s_cselect_b32 s{sT+3}, s{sT}, s{sT+3}    ; k1
s_cselect_b32 s{sT+4}, 1, -1
s_cselect_b32 s{sSGN}, 0, 0x80000000
s_cselect_b32 s{sT+5}, 0, 640
s_lshl_b32 s{sG}, s{sT+1}, 3
s_add_u32 s{sG}, s{sG}, s{sT+3}
s_lshl_b32 s{sG}, s{sG}, 3
s_add_u32 s{sG}, s{sG}, s{sT+2}
s_lshl_b32 s{sT+2}, s{sT+2}, 4
v_add_u32 v{t}, s{sT+2}, v{vC16}
v_mad_u32_u24 v{t}, v{t}, 5, s{sT+1}
v_mul_i32_i24 v{t}, s{sT+4}, v{t}
v_add_lshl_u32 v{t}, v{t}, s{sT+5}, 1
s_lshl_b32 s{sT+2}, s{sWAVE}, 4
s_add_u32 s{sT+2}, s{sT+2}, s{sT+3}
v_lshl_add_u32 v{t+1}, v{vG}, 9, s{sT+2}
v_mul_i32_i24 v{t+1}, s{sT+4}, v{t+1}
s_movk_i32 s{sT+5}, 642""")
    for tl in range(2):
        for r in range(4):
            ad = t + 2 + (4 * tl + r) % 2
            o = 8 * tl + 128 * r
            if o:
                a(f"s_mul_i32 s{sT}, s{sT+4}, {o}")
                a(f"v_add_u32 v{ad}, s{sT}, v{t+1}")
                a(f"v_and_b32 v{ad}, 2047, v{ad}")
            else:
                a(f"v_and_b32 v{ad}, 2047, v{t+1}")
            a(f"v_mad_u32_u24 v{ad}, v{ad}, s{sT+5}, v{t}")
            a(f"global_load_ushort v{WR+4*tl+r}, v{ad}, {P(sWR)}")
            a(f"global_load_ushort v{WI+4*tl+r}, v{ad}, {P(sWI)}")

def ln_stats(a, t, s1, s2):
    a(f"""v_mov_b32 v{t}, {fl(1/640)}
v_mul_f32 v{t+1}, s{s1}, v{t}
v_mul_f32 v{t+2}, s{s2}, v{t}
v_fma_f32 v{t+2}, -v{t+1}, v{t+1}, v{t+2}
v_max_f32 v{t+2}, 0, v{t+2}
v_add_f32 v{t+2}, {fl(1e-5)}, v{t+2}
v_rsq_f32 v{t+2}, v{t+2}
v_mul_f32_e64 v{t+4}, -v{t+1}, v{t+2}""")

def flag_store(a, soff, t):
    a(f"""v_mov_b32 v{t}, s{soff}
v_mov_b32 v{t+1}, s{sTAG}
s_mov_b64 exec, 1
global_store_dword v{t}, v{t+1}, {P(sWS)} sc1
s_mov_b64 exec, -1""")

def argmax_rg(a, R):
    a(f"v_lshlrev_b32 v{R+10}, 5, v0")
    a(f"v_add_u32 v{R+10}, {WS_RG}, v{R+10}")
    poll(a, [f"global_load_dwordx4 {V(R,4)}, v{R+10}, {P(sWS)} sc1",
             f"global_load_dwordx4 {V(R+4,4)}, v{R+10}, {P(sWS)} offset:16 sc1"], [R + 1, R + 3, R + 5, R + 7], R + 8)
    m = R + 8
    a(f"v_max_f32 v{m+1}, v{R}, v{R+2}")
    a(f"v_max3_f32 v{m+1}, v{m+1}, v{R+4}, v{R+6}")
    a(f"v_mov_b32 v{m}, v{m+1}")
    for r in (8, 4, 2, 1): dpp(a, "max_f32", m, m, f"row_ror:{r}")
    dpp(a, "max_f32", m, m, "row_bcast:15", "0xa")
    dpp(a, "max_f32", m, m, "row_bcast:31", "0xc")
    a(f"v_mov_b32 v{R+1}, 3")
    for j in (2, 1, 0):
        a(f"v_cmp_eq_f32 vcc, v{m+1}, v{R+2*j}")
        a(f"v_cndmask_b32 v{R+1}, v{R+1}, {j}, vcc")
    a(f"""v_readlane_b32 s{sT+1}, v{m}, 63
v_cmp_eq_f32 vcc, s{sT+1}, v{m+1}
s_ff1_i32_b64 s{sT}, vcc
s_and_b32 s{sT}, s{sT}, 63
v_readlane_b32 s{sT+2}, v{R+1}, s{sT}
s_lshl_b32 s{sT}, s{sT}, 2
s_add_u32 s{sT}, s{sT}, s{sT+2}""")

def kernel(a):
    zsc = OPT['zsc']
    a(f""".globl {KN}
.p2align 8
.type {KN},@function
{KN}:
s_cmp_ge_u32 s2, 256
s_cbranch_scc1 k0_end
s_load_dwordx16 s[4:19], s[0:1], 0
s_load_dwordx8 s[20:27], s[0:1], 64
s_load_dwordx2 s[28:29], s[0:1], 96
v_lshrrev_b32 v1, 6, v0
v_lshlrev_b32 v{NV-1}, 4, v0          ; tid*16
v_and_b32 v0, 63, v0
v_readfirstlane_b32 s{sWAVE}, v1
v_lshlrev_b32 v{vL4}, 2, v0
v_and_b32 v{vC16}, 15, v0
v_lshrrev_b32 v{vG}, 4, v0
s_lshl_b32 s{sROW}, s{sWAVE}, 8
s_add_u32 s{sROW}, s{sROW}, s2
s_mul_i32 s{sT+7}, s{sROW}, 1280
s_lshr_b32 s{sK5}, s{sWAVE}, 1
s_and_b32 s{sKH}, s{sWAVE}, 1
s_mov_b32 s{sPL}, 0x05040100
s_mov_b32 s{sPH}, 0x07060302""")
    vT16 = NV - 1
    a(f"""s_cmp_ge_u32 s{sWAVE}, 6
s_cselect_b32 s{sJ}, 1, 0
s_cmp_lt_u32 s2, 240
s_cselect_b32 s{sJ}, s{sJ}, 0""")
    mod_addr(a)
    a(f"""s_waitcnt lgkmcnt(0)
s_load_dword s{sTAG}, {P(sWS)}, 0""")
    addbase(a, sX, sX, f"s{sT+7}")
    a(f"s_mov_b64 s[26:27], {P(sOUT)}")
    addbase(a, sOUT, sOUT, f"s{sT+7}")
    a(f"""s_cmp_eq_u32 s{sWAVE}, 7
s_cselect_b32 s{sT}, s{sJ}, 0
s_cmp_eq_u32 s{sT}, 0
s_cbranch_scc1 Lnomod1""")
    mod_loads(a)
    for t in range(5): a(f"global_load_dword v{XR+t}, v{vL4}, {P(sX)} offset:{256*t}")
    a("s_waitcnt lgkmcnt(0)")
    a(f"s_add_u32 s{sTAG}, s{sTAG}, 0x9E3779B9")
    mod_compute(a, 5)
    a("s_branch Lafterc1")
    a("Lnomod1:")
    for t in range(5): a(f"global_load_dword v{XR+t}, v{vL4}, {P(sX)} offset:{256*t}")
    a(f"s_cmp_ge_u32 s{sWAVE}, 6")
    a("s_cbranch_scc1 Lnoc1")
    consts_p1(a)
    a("Lnoc1:")
    a("s_waitcnt lgkmcnt(0)")
    a(f"s_add_u32 s{sTAG}, s{sTAG}, 0x9E3779B9")
    a("Lafterc1:")
    H = T + 20
    def ln1():
        for t in range(5): unpack(a, H + 2 * t, XR + t)
        pk(a, "add", T, H, H + 2)
        pk(a, "mul", T + 2, H, H)
        for t in range(1, 5):
            if t >= 2: pk(a, "add", T, T, H + 2 * t)
            pk(a, "fma", T + 2, H + 2 * t, H + 2 * t, T + 2)
        a(f"v_add_f32 v{T}, v{T}, v{T+1}")
        a(f"v_add_f32 v{T+2}, v{T+2}, v{T+3}")
        wave_sum(a, [T, T + 2], [sT, sT + 1])
        ln_stats(a, T, sT, sT + 1)
        for t in range(5): pk(a, "fma", H + 2 * t, H + 2 * t, T + 2, T + 4, "op_sel_hi:[1,0,0]")
    a("s_cmp_ge_u32 s2, 192")
    a("s_cbranch_scc1 Lnow")
    if OPT['wearly']:
        w_gather(a, T)
        a("s_waitcnt vmcnt(16)")
        ln1()
    else:
        a("s_waitcnt vmcnt(0)")
        w_gather(a, T)
        ln1()
    consts_p2(a, T)
    a("s_branch Lw_done")
    a("Lnow:")
    a("s_waitcnt vmcnt(0)")
    ln1()
    a("Lw_done:")
    a(f"""s_cmp_eq_u32 s{sWAVE}, 6
s_cselect_b32 s{sJ}, s{sJ}, 0
s_cmp_eq_u32 s{sJ}, 0
s_cbranch_scc1 Lnomod2""")
    mod_loads(a)
    a("Lnomod2:")
    a(f"""s_mul_i32 s{sT}, s{sWAVE}, 272
s_add_u32 s{sT}, s{sT}, {L_P1}
v_add_u32 v{T+30}, s{sT}, v{vL4}
v_lshlrev_b32 v{T+31}, 4, v0              ; lane*16
s_mov_b32 s{sK}, {fl(C1)}
s_mov_b32 s{sK+2}, {fl(C2)}
s_mov_b32 s{sK+4}, {fl(-S1)}
s_mov_b32 s{sK+6}, {fl(-S2)}
s_cmp_ge_u32 s{sWAVE}, 5
s_cbranch_scc1 Lnog1""")
    G1 = GU
    ls, tags = mod_gather(a, [1, 0], L_MOD1, vT16, G1)
    poll(a, ls, tags, G1 + 16)
    a("; stamp g1")
    mod_finish(a, [1, 0], L_MOD1, vT16, G1)
    a("s_waitcnt lgkmcnt(0)")
    a("Lnog1:")
    a("s_barrier")
    for t in range(5): a(f"ds_read_b128 {V(T+4*t,4)}, v{T+31} offset:{L_MOD1+1024*t}")
    for t in range(5):
        a(f"s_waitcnt lgkmcnt({4-t})")
        pk(a, "fma", H + 2 * t, H + 2 * t, T + 4 * t, T + 4 * t + 2)
    bs = "op_sel_hi:[1,0,1]"; ng = "neg_lo:[0,1] neg_hi:[0,1]"
    k = [P(sK + 2 * i) for i in range(4)]
    pk(a, "add", T, H + 2, H + 8)
    pk(a, "add", T + 2, H + 4, H + 6)
    pk(a, "add", T + 4, H + 2, H + 8, None, ng)
    pk(a, "add", T + 6, H + 4, H + 6, None, ng)
    pk(a, "fma", H + 2, T, k[0], H, bs)
    pk(a, "fma", H + 6, T, k[1], H, bs)
    pk(a, "add", H, H, T)
    pk(a, "mul", H + 4, T + 4, k[2], None, "op_sel_hi:[1,0]")
    pk(a, "mul", H + 8, T + 4, k[3], None, "op_sel_hi:[1,0]")
    pk(a, "fma", H + 2, T + 2, k[1], H + 2, bs)
    pk(a, "fma", H + 6, T + 2, k[0], H + 6, bs)
    pk(a, "add", H, H, T + 2)
    pk(a, "fma", H + 4, T + 6, k[3], H + 4, bs)
    pk(a, "fma", H + 8, T + 6, k[2], H + 8, bs + " neg_lo:[1,0,0] neg_hi:[1,0,0]")
    for p in range(5):
        cvt(a, T + 8 + p, f"v{H+2*p}", f"v{H+2*p+1}")
        a(f"ds_write_b32 v{T+30}, v{T+8+p} offset:{p*8*272}")
    a(f"""v_mul_u32_u24 v{T+32}, 544, v{vG}
v_lshrrev_b32 v{T+33}, 2, v{vC16}
v_lshl_add_u32 v{T+32}, v{T+33}, 6, v{T+32}
v_and_b32 v{T+33}, 3, v{vC16}
v_lshl_add_u32 v{T+32}, v{T+33}, 3, v{T+32}
s_lshl_b32 s{sT}, s{sK5}, 1
s_max_u32 s{sT}, s{sT}, 1
s_sub_u32 s{sT}, s{sT}, 1
s_mul_i32 s{sT}, s{sT}, {8*272}
s_add_u32 s{sT}, s{sT}, {L_P1}
v_add_u32 v{T+32}, s{sT}, v{T+32}
s_lshl_b32 s{sT}, s{sWAVE}, 11
s_mul_i32 s{sT+1}, s2, 12288
s_add_u32 s{sT}, s{sT}, s{sT+1}
s_add_u32 s{sT}, s{sT}, {WS_Z1}
v_lshlrev_b32 v{T+33}, 9, v{vG}
v_lshl_add_u32 v{T+33}, v{vC16}, 4, v{T+33}""")
    addbase(a, sA + 2, sWS, f"s{sT}")
    a(f"""s_waitcnt lgkmcnt(0)
s_barrier
s_cmp_ge_u32 s{sWAVE}, 6
s_cbranch_scc1 Lp1_idle""")
    UR, UI, TR, TI = T, T + 8, T + 16, T + 24
    ra = T + 32
    for et in range(2):
        for h in range(2):
            a(f"ds_read_b64_tr_b16 {V(UR+4*et+2*h,2)}, v{ra} offset:{h*272+et*32}")
    a(f"s_cmp_eq_u32 s{sK5}, 0")
    a("s_cbranch_scc1 Lp1_real")
    for et in range(2):
        for h in range(2):
            a(f"ds_read_b64_tr_b16 {V(UI+4*et+2*h,2)}, v{ra} offset:{8*272+h*272+et*32}")
    a("s_waitcnt lgkmcnt(4)")
    for et in range(2):
        mfma(a, TR + 4 * et, UR + 4 * et, CM, None)
        mfma(a, TI + 4 * et, UR + 4 * et, NSM, None)
    a("s_waitcnt lgkmcnt(0)")
    for et in range(2):
        mfma(a, TR + 4 * et, UI + 4 * et, SM, TR + 4 * et)
        mfma(a, TI + 4 * et, UI + 4 * et, CM, TI + 4 * et)
    a("s_branch Lp1_tw")
    a("Lp1_real:")
    a("s_waitcnt lgkmcnt(0)")
    for et in range(2):
        mfma(a, TR + 4 * et, UR + 4 * et, CM, None)
        mfma(a, TI + 4 * et, UR + 4 * et, NSM, None)
    a("Lp1_tw:")
    AB = T
    for et in range(2):
        cmul_tw(a, TR + 4 * et, TI + 4 * et, TWC + 4 * et, TWS + 4 * et, T + 8)
        for r in range(4): cvt(a, AB + 4 * et + r, f"v{TR+4*et+r}", f"v{TI+4*et+r}")
    XRr, XI = T + 16, T + 24
    for et in range(2):
        for q in range(2):
            fb = F32 + (et * 2 + q) * 8
            mfma(a, XRr + 4 * q, AB + 4 * et, fb, None if et == 0 else XRr + 4 * q)
            mfma(a, XI + 4 * q, AB + 4 * et, fb + 4, None if et == 0 else XI + 4 * q)
    for q in range(2):
        for rr in range(4): cvt(a, T + 8 + 4 * q + rr, f"v{XRr+4*q+rr}", f"v{XI+4*q+rr}")
        a(f"global_store_dwordx4 v{T+33}, {V(T+8+4*q,4)}, {P(sA+2)} offset:{256*q} {zsc}")
    a(f"""s_and_b32 s{sT}, s2, 15
s_lshl_b32 s{sT}, s{sT}, 4
s_lshr_b32 s{sT+1}, s2, 4
s_add_u32 s{sT}, s{sT}, s{sT+1}
s_lshl_b32 s{sT}, s{sT}, 2
s_lshl_b32 s{sT+1}, s{sWAVE}, 10
s_add_u32 s{sT}, s{sT}, s{sT+1}
s_add_u32 s{sT}, s{sT}, {WS_FL1}
s_waitcnt vmcnt(0)""")
    flag_store(a, sT, T)
    consts_p3(a, T + 32)
    a("s_branch Lp1_done")
    a("Lp1_idle:")
    a(f"s_cmp_eq_u32 s{sJ}, 0")
    a("s_cbranch_scc1 Lp1_done")
    mod_compute(a, 0)
    a("Lp1_done:")
    a("s_cmp_lt_u32 s2, 192")
    a("s_cbranch_scc1 Lp2")
    a(f"""s_cmp_ge_u32 s2, 240
s_cbranch_scc1 Lp2_done
s_and_b32 s{sJ}, s2, 7
s_mul_i32 s{sJ}, s{sJ}, 6
s_sub_u32 s{sT}, s2, 192
s_lshr_b32 s{sT}, s{sT}, 3
s_add_u32 s{sJ}, s{sJ}, s{sT}
s_cmp_eq_u32 s{sKH}, 0
s_cselect_b32 s{sA}, s{sGATE}, s{sUP}
s_cselect_b32 s{sA+1}, s{sGATE+1}, s{sUP+1}
s_mul_i32 s{sT}, s{sK5}, {160*3072}
s_lshl_b32 s{sT+1}, s{sJ}, 6
s_add_u32 s{sT}, s{sT}, s{sT+1}
v_lshrrev_b32 v{vA0}, 2, v0
v_mul_u32_u24 v{vA0}, 6144, v{vA0}
v_and_b32 v{vA1}, 3, v0
v_lshl_add_u32 v{vA0}, v{vA1}, 4, v{vA0}
v_add_u32 v{vA0}, s{sT}, v{vA0}""")
    RG_ = WR
    for i in range(5):
        a(f"global_load_dwordx4 {V(RG_+8*i,4)}, v{vA0}, {P(sA)}")
        a(f"global_load_dwordx4 {V(RG_+8*i+4,4)}, v{vA0}, {P(sA)} offset:3072")
        if i < 4: a(f"v_add_u32 v{vA0}, {32*3072}, v{vA0}")
    a(f"""s_cmp_ge_u32 s{sWAVE}, 5
s_cbranch_scc1 Lnodown
s_mul_i32 s{sT}, s{sJ}, {32*1280}
s_lshl_b32 s{sT+1}, s{sWAVE}, 8
s_add_u32 s{sT}, s{sT}, s{sT+1}
s_add_u32 s{sT}, s{sT}, 3840
v_mul_u32_u24 v{vA0}, {8*1280}, v{vG}
v_lshl_add_u32 v{vA0}, v{vC16}, 4, v{vA0}
v_add_u32 v{vA0}, s{sT}, v{vA0}
v_add_u32 v{vA1}, 5120, v{vA0}""")
    for jj in range(8):
        if jj < 7: a(f"global_load_dwordx4 {V(T+4*jj,4)}, v{vA0}, {P(sDOWN)} offset:{jj*1280-3840}")
        else: a(f"global_load_dwordx4 {V(T+4*jj,4)}, v{vA1}, {P(sDOWN)}")
    a("s_waitcnt vmcnt(0)")
    for c in range(4):
        for hl in range(2):
            for r in range(4):
                a(f"v_perm_b32 v{DN+4*(2*c+hl)+r}, v{T+4*(2*r+1)+c}, v{T+4*(2*r)+c}, s{sPH if hl else sPL}")
    a("Lnodown:")
    a("s_waitcnt vmcnt(0)")
    for i in range(5):
        for c in range(4):
            for hl in range(2):
                a(f"v_perm_b32 v{GU+8*i+2*c+hl}, v{RG_+8*i+4+c}, v{RG_+8*i+c}, s{sPH if hl else sPL}")
    a("s_branch Lp2_done")
    a("Lp2:")
    Z = T; DR, DI = T + 8, T + 16; Pk = T + 24; AD = T + 32
    a(f"""s_lshl_b32 s{sT}, s{sG}, 6
s_mul_i32 s{sT+1}, s{sWAVE}, {2*12288}
s_add_u32 s{sT}, s{sT}, s{sT+1}
s_add_u32 s{sT}, s{sT}, {WS_Z1}
v_mul_u32_u24 v{AD}, {64*12288}, v{vG}
v_lshl_add_u32 v{AD}, v{vC16}, 2, v{AD}""")
    addbase(a, sA, sWS, f"s{sT}")
    addbase(a, sA + 2, sA, 12288)
    for r in range(1, 4): a(f"v_add_u32 v{AD+r}, {r*16*12288}, v{AD}")
    lw, lr, so, fa = AD + 4, AD + 5, AD + 6, AD + 7
    a(f"""v_mul_u32_u24 v{lw}, {IS}, v{vC16}
v_mad_u32_u24 v{lr}, v{vG}, 16, v{lw}
s_mul_i32 s{sT}, s{sWAVE}, {2*KS}
s_add_u32 s{sT}, s{sT}, {L_P2}
v_add_u32 v{lr}, s{sT}, v{lr}
s_movk_i32 s{sT}, {4*KS}
v_mad_u32_u24 v{lw}, v{vG}, s{sT}, v{lw}
s_lshl_b32 s{sT}, s{sWAVE}, 3
s_add_u32 s{sT}, s{sT}, {L_P2}
v_add_u32 v{lw}, s{sT}, v{lw}
v_and_b32 v{so}, 3, v{vC16}
v_lshlrev_b32 v{so}, 4, v{so}
v_and_b32 v{fa}, 12, v{vC16}
v_add_u32 v{so}, v{so}, v{fa}
v_lshl_add_u32 v{so}, v{vG}, 6, v{so}
s_lshl_b32 s{sT}, s{sG}, 14
s_lshl_b32 s{sT+1}, s{sWAVE}, 11
s_add_u32 s{sT}, s{sT}, s{sT+1}
s_add_u32 s{sT}, s{sT}, {WS_Z2}""")
    addbase(a, sA + 4, sWS, f"s{sT}")
    a(f"""s_lshr_b32 s{sT}, s{sG}, 5
s_lshl_b32 s{sT}, s{sT}, 10
s_lshl_b32 s{sT+1}, s{sWAVE}, 7
s_add_u32 s{sT}, s{sT}, s{sT+1}
s_add_u32 s{sT}, s{sT}, {WS_FL1}
v_and_b32 v{fa}, 124, v{vL4}
v_add_u32 v{fa}, s{sT}, v{fa}
s_waitcnt vmcnt(0)""")
    for j in range(8):
        a(f"v_lshlrev_b32 v{WR+j}, 16, v{WR+j}")
        a(f"v_lshlrev_b32 v{WI+j}, 16, v{WI+j}")
        a(f"v_xor_b32 v{WI+j}, s{sSGN}, v{WI+j}")
    poll(a, [f"global_load_dword v{Z}, v{fa}, {P(sWS)} sc1"], [Z], None)
    for tl in range(2):
        for r in range(4):
            a(f"global_load_dword v{Z+4*tl+r}, v{AD+r}, {P(sA+2*tl)} {zsc}")
    def stage(mats, waits=None):
        for tl in range(2):
            if waits: a(waits[tl])
            mfma(a, DR + 4 * tl, mats[tl], Z + 4 * tl, None)
            mfma(a, DI + 4 * tl, mats[tl] + 4, Z + 4 * tl, None)
    def exchange(buf):
        for r in range(4):
            for tl in range(2): cvt(a, Pk + 2 * r + tl, f"v{DR+4*tl+r}", f"v{DI+4*tl+r}")
            a(f"ds_write_b64 v{lw}, {V(Pk+2*r,2)} offset:{buf+r*KS}")
        a("s_waitcnt lgkmcnt(0)")
        a("s_barrier")
        for tl in range(2): a(f"ds_read_b128 {V(Z+4*tl,4)}, v{lr} offset:{buf+tl*KS}")
    stage([MA, MA + 8], ["s_waitcnt vmcnt(4)", "s_waitcnt vmcnt(0)"])
    exchange(0)
    stage([F16, F16], ["s_waitcnt lgkmcnt(1)", "s_waitcnt lgkmcnt(0)"])
    for tl in range(2):
        for h in (0, 2):
            o = 4 * tl + h
            pk(a, "mul", Pk + h, DI + o, WI + o)
            pk(a, "mul", DI + o, DI + o, WR + o)
        for h in (0, 2):
            o = 4 * tl + h
            pk(a, "fma", DI + o, DR + o, WI + o, DI + o)
            pk(a, "fma", DR + o, DR + o, WR + o, Pk + h, "neg_lo:[0,0,1] neg_hi:[0,0,1]")
        for r in range(4): cvt(a, Z + 4 * tl + r, f"v{DR+4*tl+r}", f"-v{DI+4*tl+r}")
    stage([MA, MA + 8])
    exchange(BUF)
    stage([F16, F16], ["s_waitcnt lgkmcnt(1)", "s_waitcnt lgkmcnt(0)"])
    for tl in range(2):
        for r in range(4):
            cvt(a, Pk + 4 * tl + r, f"v{DR+4*tl+r}", f"v{DI+4*tl+r}")
            a(f"global_store_dword v{so}, v{Pk+4*tl+r}, {P(sA+4)} offset:{1024*tl+256*r} {zsc}")
    a(f"""s_lshl_b32 s{sT}, s{sG}, 2
s_lshl_b32 s{sT+1}, s{sWAVE}, 10
s_add_u32 s{sT}, s{sT}, s{sT+1}
s_add_u32 s{sT}, s{sT}, {WS_FL2}
s_waitcnt vmcnt(0)""")
    flag_store(a, sT, T)
    a("Lp2_done:")
    GA, SB, CB, GB, VV = 72, 74, 92, 94, T + 36
    WRR = T + 30
    for t in range(5): a(f"global_load_dword v{WRR+t}, v{vL4}, {P(sRW)} offset:{256*t}")
    a(f"s_cmp_ge_u32 s{sWAVE}, 5")
    a("s_cbranch_scc1 Lnog2")
    G2 = 72
    ls, tags = mod_gather(a, [2, 3, 4, 5], L_MOD2, vT16, G2)
    poll(a, ls, tags, G2 + 32)
    mod_finish(a, [2, 3, 4, 5], L_MOD2, vT16, G2)
    a("s_waitcnt lgkmcnt(0)")
    a("Lnog2:")
    a(f"v_lshlrev_b32 v{T+29}, 4, v0")
    a("s_barrier")
    for t in range(5): a(f"ds_read_b128 {V(GA+4*t,4)}, v{T+29} offset:{L_MOD2+1024*t}")
    for t in range(5): a(f"ds_read_b128 {V(CB+4*t,4)}, v{T+29} offset:{L_MOD2+5120+1024*t}")
    a("s_waitcnt vmcnt(0)")
    for t in range(5): unpack(a, VV + 2 * t, WRR + t)
    a("s_waitcnt lgkmcnt(0)")
    pk(a, "mul", T + 2, SB, VV)
    for t in range(1, 5): pk(a, "fma", T + 2, SB + 4 * t, VV + 2 * t, T + 2)
    for t in range(5): pk(a, "mul", VV + 2 * t, VV + 2 * t, CB + 4 * t)
    pk(a, "add", T, VV, VV + 2)
    for t in range(2, 5): pk(a, "add", T, T, VV + 2 * t)
    a(f"v_add_f32 v{T}, v{T}, v{T+1}")
    a(f"v_add_f32 v{T+2}, v{T+2}, v{T+3}")
    sSV, sSB = sT + 8, sT + 9
    wave_sum(a, [T, T + 2], [sSV, sSB])
    lr3 = T + 35
    a(f"""v_mul_u32_u24 v{lr3}, 144, v{vG}
v_lshl_add_u32 v{lr3}, v{vC16}, 3, v{lr3}
s_mul_i32 s{sT}, s{sWAVE}, {RS}
s_add_u32 s{sT}, s{sT}, {L_P3}
v_add_u32 v{lr3}, s{sT}, v{lr3}
s_mov_b32 s{sK}, {fl(2*C1)}
s_mov_b32 s{sK+2}, {fl(2*C2)}
s_mov_b32 s{sK+4}, {fl(2*S1)}
s_mov_b32 s{sK+6}, {fl(2*S2)}
s_cmp_ge_u32 s{sWAVE}, 6
s_cbranch_scc1 Lp3_skip
s_and_b32 s{sT}, s2, 15
s_lshl_b32 s{sT}, s{sT}, 2
s_bfe_u32 s{sT+1}, s2, 0x20004
s_add_u32 s{sT}, s{sT}, s{sT+1}
s_lshl_b32 s{sT}, s{sT}, 2
s_lshr_b32 s{sT+1}, s2, 6
s_add_u32 s{sT}, s{sT}, s{sT+1}
s_lshl_b32 s{sT}, s{sT}, 6
s_lshl_b32 s{sT+1}, s{sWAVE}, 19
s_add_u32 s{sT}, s{sT}, s{sT+1}
s_add_u32 s{sT}, s{sT}, {WS_Z2}""")
    addbase(a, sA, sWS, f"s{sT}")
    addbase(a, sA + 2, sA, 4 << 14)
    la, lw3, fa = T + 32, T + 33, T + 34
    a(f"""v_lshrrev_b32 v{lw3}, 2, v{vC16}
v_lshl_add_u32 v{la}, v{lw3}, 3, v{vG}
v_lshlrev_b32 v{la}, 14, v{la}
v_and_b32 v{fa}, 3, v{vC16}
v_lshl_add_u32 v{la}, v{fa}, 4, v{la}
v_mul_u32_u24 v{lw3}, {RS}, v{lw3}
v_mul_u32_u24 v{fa}, 144, v{fa}
v_add_u32 v{lw3}, v{lw3}, v{fa}
v_lshl_add_u32 v{lw3}, v{vG}, 4, v{lw3}
s_lshl_b32 s{sT}, s{sK5}, 1
s_max_u32 s{sT}, s{sT}, 1
s_sub_u32 s{sT}, s{sT}, 1
s_mul_i32 s{sT}, s{sT}, {8*RS}
s_mul_i32 s{sT+1}, s{sKH}, {P3SZ}
s_add_u32 s{sT}, s{sT}, s{sT+1}
s_add_u32 s{sT}, s{sT}, {L_P3}
v_add_u32 v{lw3}, s{sT}, v{lw3}
s_bfe_u32 s{sT}, s2, 0x30001
s_lshl_b32 s{sT}, s{sT}, 10
s_lshl_b32 s{sT+1}, s{sWAVE}, 7
s_add_u32 s{sT}, s{sT}, s{sT+1}
s_add_u32 s{sT}, s{sT}, {WS_FL2}
v_and_b32 v{fa}, 124, v{vL4}
v_add_u32 v{fa}, s{sT}, v{fa}""")
    Y = T; TR, TI = T + 8, T + 16
    poll(a, [f"global_load_dword v{Y}, v{fa}, {P(sWS)} sc1"], [Y], None)
    for q in range(2): a(f"global_load_dwordx4 {V(Y+4*q,4)}, v{la}, {P(sA+2*q)} {zsc}")
    for q in range(2):
        a(f"s_waitcnt vmcnt({1-q})")
        for et in range(2):
            fb = F32 + (q * 2 + et) * 8
            mfma(a, TR + 4 * et, Y + 4 * q, fb, None if q == 0 else TR + 4 * et)
            mfma(a, TI + 4 * et, Y + 4 * q, fb + 4, None if q == 0 else TI + 4 * et)
    AB = T
    for et in range(2):
        cmul_tw(a, TR + 4 * et, TI + 4 * et, TWC + 4 * et, TWS + 4 * et, T + 24)
        for p in range(2):
            cvt(a, AB + 4 * et + p, f"v{TR+4*et+2*p}", f"v{TR+4*et+2*p+1}")
            cvt(a, AB + 4 * et + 2 + p, f"v{TI+4*et+2*p}", f"v{TI+4*et+2*p+1}")
    VR, VI = T + 8, F32
    for et in range(2):
        for nu in range(2): mfma(a, VR + 8 * et + 4 * nu, AB + 4 * et, M3 + 6 * nu + 2, None)
    a(f"s_cmp_eq_u32 s{sK5}, 0")
    a("s_cbranch_scc1 Lp3_real")
    for et in range(2):
        for nu in range(2): mfma(a, VI + 8 * et + 4 * nu, AB + 4 * et, M3 + 6 * nu, None)
    for et in range(2):
        for nu in range(2): a(f"ds_write_b128 v{lw3}, {V(VR+8*et+4*nu,4)} offset:{4*nu*RS+64*et}")
    for et in range(2):
        for nu in range(2): a(f"ds_write_b128 v{lw3}, {V(VI+8*et+4*nu,4)} offset:{8*RS+4*nu*RS+64*et}")
    a("s_branch Lp3_skip")
    a("Lp3_real:")
    for et in range(2):
        for nu in range(2): a(f"ds_write_b128 v{lw3}, {V(VR+8*et+4*nu,4)} offset:{4*nu*RS+64*et}")
    a("Lp3_skip:")
    X1 = 44; U = 12; U2 = 22; H2 = 56
    for t in range(5): unpack(a, X1 + 2 * t, XR + t)
    a("s_waitcnt lgkmcnt(0)")
    a("s_barrier")
    for p in range(5):
        a(f"ds_read_b64 {V(U+2*p,2)}, v{lr3} offset:{p*8*RS}")
        a(f"ds_read_b64 {V(U2+2*p,2)}, v{lr3} offset:{P3SZ+p*8*RS}")
    for p in range(5):
        a(f"s_waitcnt lgkmcnt({8-2*p})")
        pk(a, "add", U + 2 * p, U + 2 * p, U2 + 2 * p)
    pk(a, "add", T, U + 2, U + 6)
    pk(a, "fma", T + 2, U + 2, k[0], U, bs)
    pk(a, "fma", T + 4, U + 2, k[1], U, bs)
    pk(a, "mul", T + 6, U + 4, k[2], None, "op_sel_hi:[1,0]")
    pk(a, "mul", T + 8, U + 4, k[3], None, "op_sel_hi:[1,0]")
    pk(a, "fma", T, T, "2.0", U, bs)
    pk(a, "fma", T + 2, U + 6, k[1], T + 2, bs)
    pk(a, "fma", T + 4, U + 6, k[0], T + 4, bs)
    pk(a, "fma", T + 6, U + 8, k[3], T + 6, bs)
    pk(a, "fma", T + 8, U + 8, k[2], T + 8, bs + " neg_lo:[1,0,0] neg_hi:[1,0,0]")
    pk(a, "add", T + 10, T + 2, T + 6)
    pk(a, "add", T + 12, T + 4, T + 8)
    pk(a, "add", T + 14, T + 4, T + 8, None, ng)
    pk(a, "add", T + 16, T + 2, T + 6, None, ng)
    ys = [T, T + 10, T + 12, T + 14, T + 16]
    for t in range(5): pk(a, "fma", X1 + 2 * t, ys[t], GA + 4 * t, X1 + 2 * t)
    pk(a, "add", T, X1, X1 + 2)
    pk(a, "mul", T + 2, X1, X1)
    pk(a, "mul", T + 4, X1, VV)
    for t in range(1, 5):
        if t >= 2: pk(a, "add", T, T, X1 + 2 * t)
        pk(a, "fma", T + 2, X1 + 2 * t, X1 + 2 * t, T + 2)
        pk(a, "fma", T + 4, X1 + 2 * t, VV + 2 * t, T + 4)
    for j in (0, 2, 4): a(f"v_add_f32 v{T+j}, v{T+j}, v{T+j+1}")
    wave_sum(a, [T, T + 2, T + 4], [sT, sT + 1, sT + 2])
    ln_stats(a, T, sT, sT + 1)
    RV = T + 6
    a(f"""v_mov_b32 v{RV}, s{sT+2}
v_fma_f32 v{RV}, -v{T+1}, s{sSV}, v{RV}
v_fma_f32 v{RV}, v{RV}, v{T+2}, s{sSB}
v_max_f32 v{RV}, 0xff7fffff, v{RV}
s_lshl_b32 s{sT}, s{sWAVE}, 2
s_add_u32 s{sT}, s{sT}, {L_R}
v_mov_b32 v{T+8}, s{sT}
ds_write_b32 v{T+8}, v{RV}""")
    for t in range(5): pk(a, "fma", H2 + 2 * t, X1 + 2 * t, T + 2, T + 4, "op_sel_hi:[1,0,0]")
    for t in range(5): pk(a, "fma", H2 + 2 * t, H2 + 2 * t, CB + 4 * t, SB + 4 * t)
    a(f"""v_and_b32 v{T+8}, 28, v{vL4}
v_add_u32 v{T+8}, {L_R}, v{T+8}
s_waitcnt lgkmcnt(0)
s_barrier
ds_read_b32 v{T+9}, v{T+8}""")
    for t in range(5): pk(a, "fma", X1 + 2 * t, H2 + 2 * t, GB + 4 * t, X1 + 2 * t)
    for t in range(5): cvt(a, XR + t, f"v{X1+2*t}", f"v{X1+2*t+1}")
    def store_out():
        for t in range(5): a(f"global_store_dword v{vL4}, v{XR+t}, {P(sOUT)} offset:{256*t} {OPT['outsc']}")
    sBEST = sG
    a(f"""s_waitcnt lgkmcnt(0)
v_cmp_gt_f32 vcc, v{T+9}, v{RV}
s_cbranch_vccnz Lnotbest
v_cmp_ge_f32 vcc, v{T+9}, v{RV}
s_ff1_i32_b32 s{sT}, vcc_lo
s_cmp_lg_u32 s{sT}, s{sWAVE}
s_cbranch_scc1 Lnotbest
s_lshl_b32 s{sT}, s2, 3
s_add_u32 s{sT}, s{sT}, {WS_RG}
v_mov_b32 v{T+8}, s{sT}
v_mov_b32 v{RV+1}, s{sTAG}
s_mov_b64 exec, 1
global_store_dwordx2 v{T+8}, {V(RV,2)}, {P(sWS)} sc1
s_mov_b64 exec, -1
s_mul_i32 s{sT}, s2, 2560
s_add_u32 s{sT}, s{sT}, {WS_H2G}
v_lshl_add_u32 v{T+8}, v0, 3, s{sT}""")
    for t in range(5):
        cvt(a, H2 + 2 * t, f"v{H2+2*t}", f"v{H2+2*t+1}")
        a(f"v_mov_b32 v{H2+2*t+1}, s{sTAG}")
        a(f"global_store_dwordx2 v{T+8}, {V(H2+2*t,2)}, {P(sWS)} offset:{512*t} sc1")
    a(f"s_mov_b32 s{sBEST}, 1")
    a("s_branch Largmax")
    a("Lnotbest:")
    store_out()
    a(f"""s_mov_b32 s{sBEST}, 0
s_cmp_lt_u32 s2, 192
s_cbranch_scc1 k0_end
s_cmp_ge_u32 s2, 240
s_cbranch_scc1 k0_end
Largmax:
; stamp rpub""")
    argmax_rg(a, T + 10)
    sWIN, sRMAX = sT + 8, sT + 9
    a(f"""s_mov_b32 s{sWIN}, s{sT}
s_mov_b32 s{sRMAX}, s{sT+1}
s_cmp_eq_u32 s{sBEST}, 0
s_cbranch_scc1 Lmlp
s_cmp_eq_u32 s{sWIN}, s2
s_cbranch_scc1 Lwinner""")
    store_out()
    a("s_branch Lbest_done")
    a("Lwinner:")
    a(f"v_lshlrev_b32 v{T+8}, 4, v0")
    a(f"v_add_u32 v{T+8}, {WS_WIN+2048}, v{T+8}")
    for t in range(5):
        o = T + 12 + 4 * t
        a(f"v_mov_b32 v{o}, v{X1+2*t}")
        a(f"v_mov_b32 v{o+1}, s{sTAG}")
        a(f"v_mov_b32 v{o+2}, v{X1+2*t+1}")
        a(f"v_mov_b32 v{o+3}, s{sTAG}")
        a(f"global_store_dwordx4 v{T+8}, {V(o,4)}, {P(sWS)} offset:{1024*t-2048} sc1")
    a(f"""v_mov_b32 v{T+8}, {WS_WIN+5120}
v_mov_b32 v{T+10}, s{sROW}
v_mov_b32 v{T+11}, s{sTAG}
v_mov_b32 v{T+9}, 0
s_mov_b64 exec, 1
global_store_dwordx2 v{T+8}, {V(T+10,2)}, {P(sWS)} sc1
global_store_dword v{T+9}, v{T+11}, {P(sWS)} sc1
s_mov_b64 exec, -1
Lbest_done:
s_cmp_lt_u32 s2, 192
s_cbranch_scc1 k0_end
s_cmp_ge_u32 s2, 240
s_cbranch_scc1 k0_end
Lmlp:
s_mul_i32 s{sT}, s{sWIN}, 2560
s_mul_i32 s{sT+1}, s{sK5}, 640
s_add_u32 s{sT}, s{sT}, s{sT+1}
s_add_u32 s{sT}, s{sT}, {WS_H2G}
v_lshrrev_b32 v{T}, 2, v0
v_lshl_add_u32 v{T}, v{T}, 3, s{sT}""")
    HG = 12; ACC = 24
    poll(a, [f"global_load_dwordx2 {V(HG+2*i,2)}, v{T}, {P(sWS)} offset:{128*i} sc1" for i in range(5)],
         [HG + 2 * i + 1 for i in range(5)], T + 2)
    a("; stamp h2")
    for i in range(5):
        for u in range(8):
            a(f"v_dot2_f32_bf16 v{ACC+u}, v{GU+8*i+u}, v{HG+2*i}, " + ("0" if i == 0 else f"v{ACC+u}"))
    a(f"""v_and_b32 v{T}, 3, v0
v_lshlrev_b32 v{T}, 5, v{T}
v_lshl_add_u32 v{T}, v{vG}, 3, v{T}
s_lshl_b32 s{sT}, s{sWAVE}, 7
s_add_u32 s{sT}, s{sT}, {L_MLP}
v_add_u32 v{T}, s{sT}, v{T}
v_and_b32 v{T+1}, 7, v0
v_lshl_add_u32 v{T+1}, v{vG}, 3, v{T+1}
v_lshlrev_b32 v{T+1}, 2, v{T+1}
v_add_u32 v{T+1}, {L_MLP}, v{T+1}""")
    reduce8(a, ACC, (8, 4))
    a(f"""ds_write_b64 v{T}, {V(ACC,2)}
s_waitcnt lgkmcnt(0)
s_barrier
s_cmp_ge_u32 s{sWAVE}, 5
s_cbranch_scc1 Lreducer""")
    for q in range(4): a(f"ds_read2_b32 {V(HG+2*q,2)}, v{T+1} offset0:{64*q} offset1:{64*q+32}")
    a(f"""v_lshrrev_b32 v{T+2}, 1, v{vC16}
v_mul_u32_u24 v{T+2}, 6144, v{T+2}
v_and_b32 v{T+3}, 1, v0
v_lshl_add_u32 v{T+2}, v{T+3}, 6, v{T+2}
v_lshl_add_u32 v{T+2}, v{vG}, 4, v{T+2}
s_mul_i32 s{sT}, s{sWAVE}, {8*6144}
s_lshl_b32 s{sT+1}, s{sJ}, 7
s_add_u32 s{sT}, s{sT}, s{sT+1}
s_add_u32 s{sT}, s{sT}, {WS_PART}
v_add_u32 v{T+2}, s{sT}, v{T+2}
v_mov_b32 v{T+9}, s{sTAG}
v_mov_b32 v{T+11}, s{sTAG}
s_waitcnt lgkmcnt(2)""")
    pk(a, "add", HG, HG, HG + 2)
    a("s_waitcnt lgkmcnt(0)")
    pk(a, "add", HG + 4, HG + 4, HG + 6)
    pk(a, "add", HG, HG, HG + 4)
    sigmoid(a, HG + 2, HG)
    a(f"""v_mul_f32 v{HG}, v{HG}, v{HG+1}
v_mul_f32 v{HG}, v{HG}, v{HG+2}
v_mov_b32_dpp v{HG+1}, v{HG} quad_perm:[1,1,3,3] row_mask:0xf bank_mask:0xf""")
    cvt(a, HG, f"v{HG}", f"v{HG+1}")
    for r in range(4): a(f"v_mov_b32_dpp v{HG+4+r}, v{HG} row_newbcast:{2*r} row_mask:0xf bank_mask:0xf")
    DD = 24
    for u in range(8): mfma(a, DD + 4 * u, HG + 4, DN + 4 * u, None)
    for gmm in range(4):
        for hl in range(2):
            if gmm == 0: a(f"v_mov_b32 v{T+8+2*hl}, v{DD+4*hl}")
            else: a(f"v_mov_b32_dpp v{T+8+2*hl}, v{DD+4*(2*gmm+hl)} quad_perm:[0,1,2,3] row_mask:{hex(1<<gmm)} bank_mask:0xf")
    a(f"global_store_dwordx4 v{T+2}, {V(T+8,4)}, {P(sWS)} sc1")
    a("s_branch k0_end")
    a(f"""Lreducer:
s_cmp_lg_u32 s{sWAVE}, 7
s_cbranch_scc1 k0_end
s_cmp_ge_u32 s{sJ}, 40
s_cbranch_scc1 k0_end
s_mul_i32 s{sT}, s{sJ}, 6144
s_add_u32 s{sT}, s{sT}, {WS_PART+2048}
v_lshl_add_u32 v{T}, v0, 4, s{sT}
v_and_b32 v{T+1}, 7, v0
v_lshrrev_b32 v{T+2}, 5, v0
s_lshl_b32 s{sT}, s{sJ}, 3
v_add_u32 v{T+1}, s{sT}, v{T+1}
v_lshlrev_b32 v{T+3}, 4, v{T+1}
v_lshl_add_u32 v{T+4}, v{T+2}, 2, v{T+3}
ds_read_b32 v{T+5}, v{T+4} offset:{L_MOD2+5120+8}    ; gb
v_lshl_add_u32 v{T+3}, v{T+2}, 3, v{T+3}
v_add_u32 v{T+3}, {WS_WIN}, v{T+3}
v_mov_b32 v{T+4}, {WS_WIN+5120}
v_lshl_add_u32 v{T+1}, v{T+1}, 1, v{T+2}
v_lshlrev_b32 v{T+1}, 1, v{T+1}
v_mov_b32 v{T+6}, s{sRMAX}""")
    sigmoid(a, T + 7, T + 6)
    PR = 12
    poll(a, [f"global_load_dwordx2 {V(PR+24,2)}, v{T+3}, {P(sWS)} sc1", f"global_load_dwordx2 {V(PR+26,2)}, v{T+4}, {P(sWS)} sc1"],
         [PR + 25, PR + 27], T + 8)
    a(f"""s_waitcnt lgkmcnt(0)
v_mul_f32 v{T+7}, v{T+7}, v{T+5}
v_and_b32 v{PR+26}, 2047, v{PR+26}
v_mul_u32_u24 v{PR+26}, 1280, v{PR+26}
v_add_u32 v{T+1}, v{T+1}, v{PR+26}""")
    poll(a, [f"global_load_dwordx4 {V(PR+4*i,4)}, v{T}, {P(sWS)} offset:{1024*i-2048} sc1" for i in range(6)],
         [PR + 2 * i + 1 for i in range(12)], T + 8)
    for h in (0, 2):
        a(f"v_add_f32 v{PR+h}, v{PR+h}, v{PR+4+h}")
        a(f"v_add_f32 v{PR+8+h}, v{PR+8+h}, v{PR+12+h}")
        a(f"v_add_f32 v{PR+16+h}, v{PR+16+h}, v{PR+20+h}")
    for h in (0, 2):
        a(f"v_add_f32 v{PR+h}, v{PR+h}, v{PR+8+h}")
    for h in (0, 2):
        a(f"v_add_f32 v{PR+h}, v{PR+h}, v{PR+16+h}")
    a(f"""v_permlane32_swap_b32 v{PR}, v{PR+2}
v_add_f32 v{PR}, v{PR}, v{PR+2}
v_mov_b32 v{PR+2}, v{PR}
v_permlane16_swap_b32 v{PR}, v{PR+2}
v_add_f32 v{PR}, v{PR}, v{PR+2}""")
    dpp(a, "add_f32", PR, PR, "row_ror:8")
    a(f"v_fmac_f32 v{PR+24}, v{PR}, v{T+7}")
    cvt(a, PR + 24, f"v{PR+24}", f"v{PR+24}")
    a(f"""s_mov_b32 exec_lo, 0xff
s_mov_b32 exec_hi, 0xff
global_store_short v{T+1}, v{PR+24}, s[26:27] {OPT['outsc']}
k0_end:
s_endpgm""")

def build(stamps=False, pick=0):
    hdr = f"""; adaLN + GFNet spectral filter + mixture-of-depths MLP, one persistent launch (generated by gen2.py)
; @launch grid=(256,1,1) block=(512,1,1) lds={LDS_BYTES}
.amdgcn_target "amdgcn-amd-amdhsa--gfx950"
.text
"""
    a = Asm()
    kernel(a)
    check_paths(a.lines, sWAVE, [0, 100, 191, 192, 239, 240, 255, 256], range(8))
    if stamps: add_stamps2(a, KN, sWS, pick)
    body = a.finalize(False)
    d = f""".section .rodata,"a"
.p2align 6
.amdhsa_kernel {KN}
  .amdhsa_next_free_vgpr {NV}
  .amdhsa_next_free_sgpr {102 if stamps else 68}
  .amdhsa_accum_offset {NV}
  .amdhsa_group_segment_fixed_size 0
  .amdhsa_kernarg_size 104
  .amdhsa_user_sgpr_count 2
  .amdhsa_user_sgpr_kernarg_segment_ptr 1
  .amdhsa_system_sgpr_workgroup_id_x 1
  .amdhsa_float_denorm_mode_32 3
.end_amdhsa_kernel
"""
    return hdr + body + d

if __name__ == "__main__":
    out = sys.argv[1]
    for x in sys.argv[2:]:
        if '=' in x:
            k_, v_ = x.split('=', 1)
            OPT[k_] = int(v_) if v_.lstrip('-').isdigit() else v_
    open(out, "w").write(build("--stamps" in sys.argv))
```
